```python
import torch

def _softmax(x, axis=-1):
    return torch.softmax(x, dim=axis)
def _gelu(x):
    return torch.nn.functional.gelu(x, approximate="tanh")
def _silu(x):
    return torch.nn.functional.silu(x)
def _sigmoid(x):
    return torch.sigmoid(x)
def _layernorm(x, axis=-1, eps=1e-5):
    m = x.mean(dim=axis, keepdim=True)
    v = x.var(dim=axis, keepdim=True, unbiased=False)
    return (x - m) / torch.sqrt(v + eps)
def _scatter_add(tgt, idx, src, axis=0):
    return tgt.clone().index_add_(axis, idx, src)
def _segment_sum(src, seg, n):
    out = torch.zeros((n,) + src.shape[1:], dtype=src.dtype)
    return out.index_add_(0, seg, src)
def _pad(x, pw):
    flat = tuple(v for pair in reversed(pw) for v in pair)
    return torch.nn.functional.pad(x, flat)

kernel_name = 'gather_scatter__cheap_equivariant_egnn__graph'

def setup_inputs():

    _w = (lambda a: (lambda t: t.to(torch.bfloat16) if t.is_floating_point() else t)(torch.as_tensor(a)))
    N, deg, D, De = 10000, 16, 256, max(4, 1)
    E = N * deg
    return {
        "h": _w((lambda *s: torch.randn(*s, dtype=torch.bfloat16) * 0.2)(N, D)),
        "pos": _w((lambda *s: torch.randn(*s, dtype=torch.bfloat16) * 0.4)(N, 3)),
        "e_attr": _w((lambda *s: torch.randn(*s, dtype=torch.bfloat16) * 0.4)(E, De)),
        "src": _w((lambda lo, hi, *s: torch.randint(lo, hi, s))(0, N, E).to(torch.int64)),
        "dst": _w((lambda lo, hi, *s: torch.randint(lo, hi, s))(0, N, E).to(torch.int64)),
        "w_e": _w(0.1 * (lambda *s: torch.randn(*s, dtype=torch.bfloat16) * 0.4)(2 * D + 1 + De, D)),
        "w_x": _w(0.1 * (lambda *s: torch.randn(*s, dtype=torch.bfloat16) * 0.2)(D, 1)),
        "w_h": _w(0.1 * (lambda *s: torch.randn(*s, dtype=torch.bfloat16) * 0.2)(2 * D, D)),
    }

def reference(h, pos, e_attr, src, dst, w_e, w_x, w_h):
    N, D = h.shape[0], h.shape[1]
    diff = pos[dst] - pos[src]
    dist2 = torch.sum(diff * diff, axis=-1, keepdims=True)
    e_in = torch.concatenate([h[dst], h[src], dist2, e_attr], axis=-1)
    m_ij = _silu(e_in @ w_e)
    coord_scale = m_ij @ w_x
    pos_new = pos + _segment_sum(diff * coord_scale, dst, N)
    m_i = _segment_sum(m_ij, dst, N)
    h_new = h + _silu(torch.concatenate([h, m_i], axis=-1) @ w_h)
    return h_new, pos_new
```

```python
import re


class Asm:
    def __init__(self):
        self.lines = []
        self._uid = 0

    def __call__(self, text):
        for ln in text.split("\n"):
            s = ln.strip()
            if s:
                self.lines.append(s)

    def label(self, name):
        self.lines.append(name + ":")

    def uid(self, base):
        self._uid += 1
        return f"{base}_{self._uid}"

    def text(self):
        out = []
        for s in self.lines:
            if s.endswith(":") or s.startswith("."):
                out.append(s)
            else:
                out.append("    " + s)
        return "\n".join(out) + "\n"


def v(a, n=1):
    return f"v{a}" if n == 1 else f"v[{a}:{a+n-1}]"


def s(a, n=1):
    return f"s{a}" if n == 1 else f"s[{a}:{a+n-1}]"


_REG = re.compile(r"^(-|abs\()?([vsa])(\d+)\)?$")
_RNG = re.compile(r"^([vsa])\[(\d+):(\d+)\]$")
TRANS = ("v_exp_", "v_log_", "v_rcp_", "v_rsq_", "v_sqrt_", "v_sin_", "v_cos_")


def regs_of(tok):
    tok = tok.strip()
    m = _REG.match(tok)
    if m:
        return {(m.group(2), int(m.group(3)))}
    m = _RNG.match(tok.lstrip("-"))
    if m:
        return {(m.group(1), i) for i in range(int(m.group(2)), int(m.group(3)) + 1)}
    if tok == "vcc":
        return {("s", "vcc")}
    if tok in ("vcc_lo", "vcc_hi"):
        return {("s", "vcc")}
    if tok in ("exec", "exec_lo", "exec_hi"):
        return {("s", "exec")}
    if tok == "m0":
        return {("s", "m0")}
    return set()


class Ins:
    def __init__(self, text, idx):
        self.text = text
        self.idx = idx
        t = text.split(";")[0].strip()
        parts = t.split(None, 1)
        self.op = parts[0]
        rest = parts[1] if len(parts) > 1 else ""
        ops = [x.strip() for x in re.split(r",(?![^\[]*\])", rest)] if rest else []
        self.mods = ""
        if ops:
            last = ops[-1].split(None, 1)
            if len(last) > 1:
                ops[-1] = last[0]
                self.mods = last[1]
        self.ops = ops
        op = self.op
        self.is_valu = op.startswith("v_")
        self.is_mfma = op.startswith("v_mfma") or op.startswith("v_smfmac")
        self.is_trans = op.startswith(TRANS)
        self.is_dot = op.startswith("v_dot")
        self.is_ds = op.startswith("ds_")
        self.is_vmem = op.startswith(("buffer_", "global_", "flat_"))
        self.is_salu = op.startswith("s_")
        self.is_dpp = "_dpp" in op or "row_" in self.mods or "quad_perm" in self.mods
        self.lds_dma = self.is_vmem and ("_lds_" in op or re.search(r"\blds\b", self.mods) is not None)
        self.dst, self.src = set(), set()
        R = [regs_of(o) for o in ops]
        if self.is_valu:
            if op.startswith("v_cmpx"):
                self.dst = R[0] | {("s", "exec")}
                for r in R[1:]:
                    self.src |= r
            elif op.startswith(("v_add_co", "v_sub_co", "v_addc_co", "v_subb_co", "v_subrev_co")):
                self.dst = R[0] | R[1]
                for r in R[2:]:
                    self.src |= r
            elif op.startswith(("v_permlane32_swap", "v_permlane16_swap", "v_swap")):
                self.dst = R[0] | R[1]
                self.src = R[0] | R[1]
            elif op == "v_nop":
                pass
            else:
                self.dst = R[0]
                for r in R[1:]:
                    self.src |= r
                if op.startswith(("v_fmac", "v_dot2c", "v_pk_fmac", "v_writelane")) or self.is_dpp or "_sdwa" in op:
                    self.src |= R[0]
            if self.is_mfma:
                self.srcA, self.srcB, self.srcC = R[1], R[2], R[3]
                self.passes = 8 if "32x32" in op else 4
        elif self.is_ds:
            if op.startswith(("ds_read", "ds_bpermute", "ds_permute", "ds_swizzle")) or "_rtn" in op:
                self.dst = R[0]
                for r in R[1:]:
                    self.src |= r
            else:
                for r in R:
                    self.src |= r
        elif self.is_vmem:
            if "load" in op and not self.lds_dma:
                self.dst = R[0]
                for r in R[1:]:
                    self.src |= r
            else:
                for r in R:
                    self.src |= r
            self.store_data = set()
            if "store" in op and ("x3" in op or "x4" in op):
                self.store_data = R[0] if op.startswith("buffer") else R[1]
        elif self.is_salu:
            nodst = ("s_cmp", "s_bitcmp", "s_cbranch", "s_branch", "s_waitcnt", "s_nop", "s_barrier", "s_endpgm",
                     "s_setprio", "s_sleep", "s_setpc")
            if not op.startswith(nodst) and R:
                self.dst = R[0]
                for r in R[1:]:
                    self.src |= r
                if "saveexec" in op:
                    self.dst |= {("s", "exec")}
            else:
                for r in R:
                    self.src |= r

    def states(self):
        if self.op == "s_nop":
            return int(self.ops[0], 0) + 1
        return 1


def vg(rs):
    return {r for r in rs if r[0] in "va"}


def sg(rs):
    return {r for r in rs if r[0] == "s"}


def need(p, c):
    n = 0
    if p.is_valu and not p.is_mfma:
        wv, ws = vg(p.dst), sg(p.dst)
        if c.is_mfma and wv & (c.srcA | c.srcB | c.srcC):
            n = max(n, 3 if p.is_dot else 2)
        if c.is_valu and c.is_dpp and wv & c.src:
            n = max(n, 2)
        if c.op.startswith(("v_readlane", "v_readfirstlane")) and wv & c.src:
            n = max(n, 1)
        if c.op.startswith("v_permlane") and wv & c.src:
            n = max(n, 2)
        if p.is_trans and c.is_valu and not c.is_trans and wv & c.src:
            n = max(n, 1)
        if ("_sdwa" in p.op or "op_sel:" in p.mods) and c.is_valu and wv & (c.src | c.dst):
            n = max(n, 1)
        if p.is_dot and (c.is_valu or c.is_ds or c.is_vmem) and wv & (c.src | c.dst):
            same_c = False
            if c.op == p.op:
                ab = set()
                for o in c.ops[1:3]:
                    ab |= regs_of(o)
                same_c = not (wv & ab)
            if not same_c:
                n = max(n, 3)
        wsx = ws - {("s", "exec")}
        if wsx:
            if c.is_valu and wsx & c.src:
                n = max(n, 4 if c.op.startswith(("v_readlane", "v_writelane")) else 2)
            if c.is_vmem and wsx & c.src:
                n = max(n, 5)
        if ("s", "exec") in ws:
            if c.is_valu and c.is_dpp:
                n = max(n, 5)
            if c.op.startswith(("v_readlane", "v_readfirstlane", "v_writelane", "v_permlane")) or c.is_mfma:
                n = max(n, 4)
    if p.is_mfma:
        D = p.dst
        big = {4: 8, 8: 12}[p.passes]
        if c.is_mfma:
            if D & (c.srcA | c.srcB):
                n = max(n, big)
            if D & c.srcC:
                if not (c.srcC == D and c.passes == p.passes):
                    n = max(n, {4: 6, 8: 10}[p.passes])
            elif D & c.dst:
                n = max(n, {4: 6, 8: 10}[p.passes])
        elif (c.is_valu or c.is_ds or c.is_vmem) and D & (c.src | c.dst):
            n = max(n, big)
        if c.is_valu and not c.is_mfma and p.srcC & c.dst:
            n = max(n, {4: 3, 8: 7}[p.passes])
    if p.is_salu and ("s", "m0") in p.dst and (c.lds_dma or "addtid" in c.op):
        n = max(n, 1)
    if p.is_vmem and getattr(p, "store_data", None) and p.store_data & c.dst:
        n = max(n, 2 if c.is_valu else 1)
    return n


MAXW = 12


def check_hazards(lines):
    ins, labels = [], {}
    for ln in lines:
        t = ln.split(";")[0].strip()
        if not t or t.startswith("."):
            continue
        if t.endswith(":"):
            labels[t[:-1]] = len(ins)
            continue
        ins.append(Ins(t, len(ins)))

    def succ(i):
        x = ins[i]
        if x.op == "s_endpgm":
            return []
        if x.op == "s_branch":
            return [labels[x.ops[0]]]
        r = [i + 1] if i + 1 < len(ins) else []
        if x.op.startswith("s_cbranch"):
            r.append(labels[x.ops[0]])
        return r

    problems = []
    for p in ins:
        if not (p.is_valu or p.is_salu or p.is_vmem):
            continue
        stack = [(j, 0) for j in succ(p.idx)]
        seen = {}
        while stack:
            j, d = stack.pop()
            if j >= len(ins) or d >= MAXW or seen.get(j, 99) <= d:
                continue
            seen[j] = d
            c = ins[j]
            n = need(p, c)
            if n > d:
                problems.append(f"hazard: need {n} have {d}: [{p.idx}] {p.text}  ->  [{c.idx}] {c.text}")
            for k in succ(j):
                stack.append((k, d + c.states()))
    return problems
```

```python
import struct
from asmlib import v, s

NAME = "gather_scatter__cheap_equivariant_egnn__graph"
K1_NAME = "egnn_prep_kernel"
K2_NAME = NAME + "_kernel"

LOG2E_NEG = -1.4426950408889634
LN2_NEG = -0.6931471805599453

REC_STRIDE = 12544
WS_B = 4096
WS_REC = 5242880
WS_OFF = WS_REC + 256 * REC_STRIDE
WS_WF = WS_OFF + 256 * 1024
WS_KC = WS_WF + 384 * 1024
WS_SPILL = WS_KC + 8192
WS_END = WS_SPILL + 256 * 8 * 5 * 4096
WS_STAMP = 64 << 20


def fbits(x):
    return "0x%08x" % struct.unpack("<I", struct.pack("<f", x))[0]


def scan(a, r, op, width):
    for sh in (1, 2, 4, 8):
        a(f"s_nop 1\n{op}_dpp v{r}, v{r}, v{r} row_shr:{sh} row_mask:0xf bank_mask:0xf bound_ctrl:1")
    a(f"s_nop 1\n{op}_dpp v{r}, v{r}, v{r} row_bcast:15 row_mask:0xa bank_mask:0xf")
    if width == 64:
        a(f"s_nop 1\n{op}_dpp v{r}, v{r}, v{r} row_bcast:31 row_mask:0xc bank_mask:0xf")


def scan2(a, r0, r1, op):
    a("s_nop 0")
    for sh in (1, 2, 4, 8):
        a(f"{op}_dpp v{r0}, v{r0}, v{r0} row_shr:{sh} row_mask:0xf bank_mask:0xf bound_ctrl:1")
        a(f"{op}_dpp v{r1}, v{r1}, v{r1} row_shr:{sh} row_mask:0xf bank_mask:0xf bound_ctrl:1")
        a("s_nop 0")
    for bc, rm in ((15, "0xa"), (31, "0xc")):
        a(f"{op}_dpp v{r0}, v{r0}, v{r0} row_bcast:{bc} row_mask:{rm} bank_mask:0xf")
        a(f"{op}_dpp v{r1}, v{r1}, v{r1} row_bcast:{bc} row_mask:{rm} bank_mask:0xf")
        a("s_nop 0")


def node_addrs(a, vL, vHB, vHS, X, sRow0, base, stride, zero, sT1):
    x0, x1, x2, x3 = X
    if sRow0 is not None:
        a(f"s_mul_i32 s{sT1}, s{sRow0}, {stride}\ns_add_u32 s{sT1}, s{sT1}, {base}")
    else:
        a(f"s_mov_b32 s{sT1}, {base}")
    a(f"""
    v_and_b32 v{x0}, 31, v{vL}
    v_lshrrev_b32 v{x1}, 5, v{vL}
    v_mul_u32_u24 v{x0}, {stride}, v{x0}
    v_lshl_add_u32 v{x1}, v{x1}, 4, s{sT1}
    v_add_u32 v{vHB}, v{x0}, v{x1}
    v_bfe_u32 v{x0}, v{vL}, 3, 1
    v_and_b32 v{x2}, 3, v{vL}
    v_lshl_add_u32 v{x0}, v{x0}, 2, v{x2}
    v_mul_u32_u24 v{x0}, {stride}, v{x0}
    v_lshrrev_b32 v{x2}, 2, v{vL}
    v_lshrrev_b32 v{x3}, 4, v{vL}
    v_xor_b32 v{x2}, v{x2}, v{x3}
    v_and_b32 v{x2}, 1, v{x2}
    v_cmp_eq_u32 vcc, 0, v{x2}
    v_add_u32 v{x0}, v{x0}, v{x1}
    v_add_u32 v{x0}, {32*stride}, v{x0}
    v_mov_b32 v{x1}, {zero}
    v_cndmask_b32_e64 v{vHS}, v{x1}, v{x0}, vcc
    """)


def out_addrs(a, vL, vSB, vSS, X, sRow0, base, stride, sCol, sT1):
    x0, x1, x2, x3 = X
    if sRow0 is not None:
        a(f"s_mul_i32 s{sT1}, s{sRow0}, {stride}\ns_add_u32 s{sT1}, s{sT1}, s{sCol}\ns_add_u32 s{sT1}, s{sT1}, {base}")
    else:
        a(f"s_add_u32 s{sT1}, s{sCol}, {base}")
    a(f"""
    v_and_b32 v{x0}, 31, v{vL}
    v_lshrrev_b32 v{x1}, 5, v{vL}
    v_mul_u32_u24 v{x0}, {stride}, v{x0}
    v_lshl_add_u32 v{x1}, v{x1}, 3, s{sT1}
    v_add_u32 v{vSB}, v{x0}, v{x1}
    v_bfe_u32 v{x0}, v{vL}, 3, 1
    v_and_b32 v{x2}, 3, v{vL}
    v_lshl_add_u32 v{x0}, v{x0}, 2, v{x2}
    v_mul_u32_u24 v{x0}, {stride}, v{x0}
    v_bfe_u32 v{x2}, v{vL}, 2, 1
    v_lshrrev_b32 v{x3}, 4, v{vL}
    v_lshl_add_u32 v{x0}, v{x2}, 5, v{x0}
    v_lshl_add_u32 v{x0}, v{x3}, 3, v{x0}
    s_add_u32 s{sT1}, s{sT1}, {32*stride}
    v_add_u32 v{vSS}, s{sT1}, v{x0}
    """)


STAMP0 = 70


def stamp(a, cfg, k, i, wait=False):
    if not cfg.get("stamps"):
        return
    if wait:
        a("s_waitcnt vmcnt(0)")
    a(f"s_memrealtime s[{STAMP0+2*i}:{STAMP0+2*i+1}]" if cfg.get("stamps") == "rt" else f"s_memtime s[{STAMP0+2*i}:{STAMP0+2*i+1}]")
    if cfg.get("stamp_wait", True) and i > 0:
        a("s_waitcnt lgkmcnt(0)")


def stamp_flush(a, cfg, k, sWS, n=14):
    if not cfg.get("stamps"):
        return
    off = WS_STAMP + (0 if k == "k1" else 1 << 20)
    a(f"""
    s_waitcnt lgkmcnt(0)
    s_mov_b64 exec, -1
    v_lshrrev_b32 v2, 6, v0
    s_lshl_b32 s3, s2, 4
    v_add_u32 v2, s3, v2
    v_lshlrev_b32 v2, 6, v2
    v_add_u32 v2, {off}, v2
    """)
    for i in range(n):
        a(f"v_mov_b32 v3, s{STAMP0+2*i}\nglobal_store_dword v2, v3, s[{sWS}:{sWS+1}] offset:{4*i}")
    a("s_waitcnt vmcnt(0)")
```

```python
from asmlib import Asm, v, s
from common import *

HIST, ZERO, STARTS, REC = 0, 1024, 1536, 2560
STG = REC + REC_STRIDE
HT = STG + 80 * 272
WT = HT + 80 * 528
K1_LDS = WT + 65536
K1_THREADS = 640


def gen_k1(a: Asm, cfg):
    st = cfg.get("k1_store", "sc1")
    sWAVE, sRT, sHALF, sT0, sT1, sT2 = 36, 37, 38, 39, 42, 43
    sEDGE = 40
    sPOS = 24
    vT, vL = 0, 1
    vDST, vSRC, vEA = 2, 3, 4
    vX0, vX1, vX2, vX3 = 6, 7, 8, 9
    vPD, vPS = 10, 12
    vBK, vDL, vRK = 14, 15, 16
    vHA = 17
    vH = 20
    vF = 36
    vC = 44
    a.label(K1_NAME)
    a(f"""
    s_cmp_ge_u32 s2, 256
    s_cbranch_scc1 K1_exit
    s_load_dwordx16 s[4:19], s[0:1], 0
    s_load_dwordx2 s[20:21], s[0:1], 80
    """)
    stamp(a, cfg, "k1", 0)
    a(f"""
    v_lshrrev_b32 v{vX0}, 6, v0
    v_and_b32 v{vL}, 63, v0
    v_readfirstlane_b32 s{sWAVE}, v{vX0}
    v_lshlrev_b32 v{vX1}, 2, v0
    v_mov_b32 v{vX2}, 0
    v_cmp_gt_u32 vcc, 625, v0
    s_cmp_ge_u32 s{sWAVE}, 6
    s_cbranch_scc1 K1_nozero
    ds_write_b32 v{vX1}, v{vX2}
    K1_nozero:
    s_mov_b64 s[{sEDGE}:{sEDGE+1}], vcc
    s_and_b32 s{sT0}, s2, 7
    s_lshr_b32 s{sT1}, s2, 3
    s_and_b32 s{sHALF}, s{sT1}, 1
    s_lshr_b32 s{sT1}, s{sT1}, 1
    s_lshl_b32 s{sT1}, s{sT1}, 3
    s_add_u32 s{sRT}, s{sT1}, s{sT0}
    s_min_u32 s{sRT}, s{sRT}, 124
    s_mul_i32 s{sT0}, s2, 625
    v_min_u32 v{vX0}, 624, v0
    v_add_u32 v{vX0}, s{sT0}, v{vX0}
    v_lshlrev_b32 v{vX1}, 2, v{vX0}
    v_lshlrev_b32 v{vX2}, 3, v{vX0}
    s_mul_i32 s{sT0}, s{sRT}, 80
    s_lshl_b32 s{sT1}, s{sWAVE}, 3
    s_add_u32 s{sT0}, s{sT0}, s{sT1}
    s_lshl_b32 s{sT0}, s{sT0}, 9
    v_lshl_add_u32 v{vX3}, v{vL}, 4, s{sT0}
    s_mov_b32 s{sPOS+2}, 60000
    s_mov_b32 s{sPOS+3}, 0x20000
    s_waitcnt lgkmcnt(0)
    global_load_dword v{vDST}, v{vX1}, s[12:13]
    global_load_dword v{vSRC}, v{vX1}, s[10:11]
    global_load_dwordx2 v[{vEA}:{vEA+1}], v{vX2}, s[8:9]
    """)
    for i in range(4):
        a(f"global_load_dwordx4 {v(vH+4*i,4)}, v{vX3}, s[4:5] offset:{1024*i}")
    a(f"""
    s_mov_b32 s{sPOS}, s6
    s_mov_b32 s{sPOS+1}, s7
    s_cmp_ge_u32 s{sWAVE}, 8
    s_cbranch_scc1 K1_fragload
    """)
    a(f"""
    v_lshrrev_b32 v{vX0}, 4, v{vL}
    v_and_b32 v{vX1}, 15, v{vL}
    v_lshlrev_b32 v{vX2}, 2, v{vX0}
    v_xor_b32 v{vX1}, v{vX1}, v{vX2}
    v_lshlrev_b32 v{vX1}, 4, v{vX1}
    v_lshl_add_u32 v{vX1}, v{vX0}, 9, v{vX1}
    s_lshl_b32 s{sT0}, s{sWAVE}, 14
    s_lshl_b32 s{sT1}, s{sHALF}, 8
    s_add_u32 s{sT0}, s{sT0}, s{sT1}
    s_add_u32 s{sT0}, s{sT0}, {256*512}
    v_add_u32 v{vX1}, s{sT0}, v{vX1}
    s_lshl_b32 s{sT0}, s{sWAVE}, 13
    s_add_u32 m0, s{sT0}, {WT}
    s_nop 0
    """)
    for i in range(8):
        if i == 4:
            a(f"s_add_u32 m0, s{sT0}, {WT+4096}")
            a(f"v_add_u32 v{vX1}, {1024+4096}, v{vX1}")
        elif i:
            a(f"v_add_u32 v{vX1}, 1024, v{vX1}")
        a(f"global_load_lds_dwordx4 v{vX1}, s[14:15] offset:{1024*(i&3)}")
    a("s_branch K1_loaded")
    a(f"""
    K1_fragload:
    s_lshl_b32 s{sT0}, s2, 1
    s_add_u32 s{sT0}, s{sT0}, s{sWAVE}
    s_sub_u32 s{sT0}, s{sT0}, 8
    s_sub_u32 s{sT1}, s{sT0}, 128
    s_cmp_ge_u32 s{sT0}, 384
    s_cselect_b32 s44, s{sT1}, s{sT0}
    s_cmp_lt_u32 s44, 128
    s_cselect_b32 s46, s14, s18
    s_cselect_b32 s47, s15, s19
    s_cmp_ge_u32 s44, 256
    s_cselect_b32 s{sT0}, {256*512}, 0
    s_and_b32 s{sT1}, s44, 15
    s_lshl_b32 s{sT1}, s{sT1}, 13
    s_add_u32 s{sT0}, s{sT0}, s{sT1}
    s_bfe_u32 s{sT1}, s44, 0x30004
    s_lshl_b32 s{sT1}, s{sT1}, 6
    s_add_u32 s{sT0}, s{sT0}, s{sT1}
    v_lshrrev_b32 v{vX0}, 5, v{vL}
    v_and_b32 v{vX1}, 31, v{vL}
    v_lshlrev_b32 v{vX0}, 12, v{vX0}
    v_lshl_add_u32 v{vX1}, v{vX1}, 1, v{vX0}
    v_add_u32 v{vX1}, s{sT0}, v{vX1}
    """)
    for j in range(8):
        a(f"global_load_ushort v{vF+j}, v{vX1}, s[46:47] offset:{512*j}")
    a(f"""
    K1_loaded:
    s_barrier
    v_lshrrev_b32 v{vX0}, 5, v{vL}
    v_and_b32 v{vX1}, 31, v{vL}
    s_mul_i32 s{sT0}, s{sWAVE}, {8*528}
    s_add_u32 s{sT0}, s{sT0}, {HT}
    v_mul_u32_u24 v{vX0}, 528, v{vX0}
    v_lshl_add_u32 v{vX1}, v{vX1}, 4, s{sT0}
    v_add_u32 v{vHA}, v{vX0}, v{vX1}
    v_mov_b32 v{vX3}, 1
    s_waitcnt vmcnt(13)
    """)
    stamp(a, cfg, "k1", 1)
    a(f"""
    v_mul_u32_u24 v{vX0}, 6, v{vDST}
    v_mul_u32_u24 v{vX1}, 6, v{vSRC}
    v_mul_u32_u24 v{vBK}, {52429}, v{vDST}
    v_and_b32 v{vX0}, -4, v{vX0}
    v_and_b32 v{vX1}, -4, v{vX1}
    buffer_load_dwordx2 v[{vPD}:{vPD+1}], v{vX0}, s[{sPOS}:{sPOS+3}], 0 offen
    buffer_load_dwordx2 v[{vPS}:{vPS+1}], v{vX1}, s[{sPOS}:{sPOS+3}], 0 offen
    v_lshrrev_b32 v{vBK}, 21, v{vBK}
    v_mul_u32_u24 v{vDL}, 40, v{vBK}
    v_lshlrev_b32 v{vBK}, 2, v{vBK}
    v_sub_u32 v{vDL}, v{vDST}, v{vDL}
    s_mov_b64 exec, s[{sEDGE}:{sEDGE+1}]
    ds_add_rtn_u32 v{vRK}, v{vBK}, v{vX3}
    s_mov_b64 exec, -1
    v_lshl_or_b32 v{vDL}, v{vSRC}, 16, v{vDL}
    """)
    for i in range(4):
        a(f"s_waitcnt vmcnt({13-i})")
        a(f"ds_write_b128 v{vHA}, {v(vH+4*i,4)} offset:{1056*i}")
    a(f"""
    v_lshlrev_b32 v{vX2}, 4, v{vL}
    s_waitcnt lgkmcnt(0)
    s_barrier
    """)
    stamp(a, cfg, "k1", 2)
    c0, sm, inc, o0 = vC, vC + 4, vC + 5, vC + 8
    a(f"""
    ds_read_b128 {v(c0,4)}, v{vX2} offset:{HIST}
    s_waitcnt lgkmcnt(0)
    v_add3_u32 v{sm}, v{c0}, v{c0+1}, v{c0+2}
    v_add_u32 v{sm}, v{sm}, v{c0+3}
    v_mov_b32 v{inc}, v{sm}
    """)
    scan(a, inc, "v_add_u32", 64)
    a(f"""
    v_sub_u32 v{o0}, v{inc}, v{sm}
    v_add_u32 v{o0+1}, v{o0}, v{c0}
    v_add_u32 v{o0+2}, v{o0+1}, v{c0+1}
    v_add_u32 v{o0+3}, v{o0+2}, v{c0+2}
    ds_write_b128 v{vX2}, {v(o0,4)} offset:{STARTS}
    ds_read_b32 v{vBK}, v{vBK} offset:{STARTS}
    v_and_b32 v{vX0}, 1, v{vDST}
    v_and_b32 v{vX1}, 1, v{vSRC}
    v_lshlrev_b32 v{vX0}, 4, v{vX0}
    v_lshlrev_b32 v{vX1}, 4, v{vX1}
    s_waitcnt vmcnt(0)
    """)
    stamp(a, cfg, "k1", 3)
    t0, t1, t2, t3 = vH, vH + 1, vH + 2, vH + 3
    t4, t5 = vH + 4, vH + 5
    HI = "0xffff0000"
    a(f"""
    v_alignbit_b32 v{vPD}, v{vPD+1}, v{vPD}, v{vX0}
    v_alignbit_b32 v{vPS}, v{vPS+1}, v{vPS}, v{vX1}
    v_lshrrev_b32 v{vPD+1}, v{vX0}, v{vPD+1}
    v_lshrrev_b32 v{vPS+1}, v{vX1}, v{vPS+1}
    v_lshlrev_b32 v{t0}, 16, v{vPD}
    v_lshlrev_b32 v{t1}, 16, v{vPS}
    v_and_b32 v{t2}, {HI}, v{vPD}
    v_and_b32 v{t3}, {HI}, v{vPS}
    v_lshlrev_b32 v{t4}, 16, v{vPD+1}
    v_lshlrev_b32 v{t5}, 16, v{vPS+1}
    v_sub_f32 v{t0}, v{t0}, v{t1}
    v_sub_f32 v{t2}, v{t2}, v{t3}
    v_sub_f32 v{t4}, v{t4}, v{t5}
    v_cvt_pk_bf16_f32 v{t0}, v{t0}, v{t0}
    v_cvt_pk_bf16_f32 v{vPS}, v{t2}, v{t4}
    v_lshlrev_b32 v{t0}, 16, v{t0}
    v_lshlrev_b32 v{t2}, 16, v{vPS}
    v_and_b32 v{t4}, {HI}, v{vPS}
    v_mul_f32 v{t1}, v{t0}, v{t0}
    v_mul_f32 v{t2}, v{t2}, v{t2}
    v_mul_f32 v{t4}, v{t4}, v{t4}
    v_cvt_pk_bf16_f32 v{t1}, v{t1}, v{t2}
    v_cvt_pk_bf16_f32 v{t4}, v{t4}, v{t4}
    v_lshlrev_b32 v{t2}, 16, v{t1}
    v_and_b32 v{t1}, {HI}, v{t1}
    v_lshlrev_b32 v{t4}, 16, v{t4}
    v_add_f32 v{t1}, v{t1}, v{t2}
    v_add_f32 v{t1}, v{t1}, v{t4}
    v_cvt_pk_bf16_f32 v{vPD}, v{t1}, v{t0}
    s_waitcnt lgkmcnt(0)
    v_add_u32 v{vBK}, v{vBK}, v{vRK}
    v_mul_u32_u24 v{vBK}, 20, v{vBK}
    v_add_u32 v{vBK}, {REC}, v{vBK}
    s_mov_b64 exec, s[{sEDGE}:{sEDGE+1}]
    ds_write2_b32 v{vBK}, v{vEA}, v{vEA+1} offset0:0 offset1:1
    ds_write2_b32 v{vBK}, v{vPD}, v{vDL} offset0:2 offset1:3
    ds_write_b32 v{vBK}, v{vPS} offset:16
    s_mov_b64 exec, -1
    s_cmp_ge_u32 s{sWAVE}, 8
    s_cbranch_scc1 K1_side
    """)
    vWA, vHB, vHS, vSB, vSS = 2, 3, 4, 5, 10
    sRS, sCT = 44, 45
    a(f"""
    s_lshr_b32 s{sRS}, s{sWAVE}, 2
    s_and_b32 s{sCT}, s{sWAVE}, 3
    v_bfe_u32 v{vX0}, v{vL}, 2, 2
    v_lshrrev_b32 v{vX1}, 5, v{vL}
    v_lshl_add_u32 v{vX2}, v{vX1}, 3, v{vX0}
    v_lshlrev_b32 v{vWA}, 8, v{vX2}
    v_bfe_u32 v{vX2}, v{vL}, 4, 1
    v_bfe_u32 v{vX3}, v{vL}, 1, 1
    v_lshl_add_u32 v{vX2}, v{vX2}, 1, v{vX3}
    s_lshl_b32 s{sT0}, s{sCT}, 2
    v_add_u32 v{vX2}, s{sT0}, v{vX2}
    v_lshlrev_b32 v{vX0}, 2, v{vX0}
    v_xor_b32 v{vX2}, v{vX2}, v{vX0}
    v_lshl_add_u32 v{vWA}, v{vX2}, 4, v{vWA}
    v_and_b32 v{vX2}, 1, v{vL}
    v_lshl_add_u32 v{vWA}, v{vX2}, 3, v{vWA}
    v_add_u32 v{vWA}, {WT}, v{vWA}
    s_mul_i32 s{sT0}, s{sRS}, 40
    """)
    node_addrs(a, vL, vHB, vHS, (vX0, vX1, vX2, vX3), sT0, HT, 528, ZERO, sT1=sT1)
    a(f"s_lshl_b32 s{sT2}, s{sCT}, 6")
    out_addrs(a, vL, vSB, vSS, (vX0, vX1, vX2, vX3), sT0, STG, 272, sT2, sT1=sT1)
    a("s_waitcnt lgkmcnt(0)\ns_barrier")
    stamp(a, cfg, "k1", 4)
    AB, AS, FR = 64, 80, 12
    NSET = 4

    def rd(t):
        b = FR + 12 * (t % NSET)
        a(f"ds_read_b64_tr_b16 {v(b,2)}, v{vWA} offset:{4096*t}")
        a(f"ds_read_b64_tr_b16 {v(b+2,2)}, v{vWA} offset:{4096*t+1024}")
        a(f"ds_read_b128 {v(b+4,4)}, v{vHB} offset:{32*t}")
        a(f"ds_read_b128 {v(b+8,4)}, v{vHS} offset:{32*t}")
    for t in range(3):
        rd(t)
    for t in range(16):
        left = min(15, t + 2) - t
        a(f"s_waitcnt lgkmcnt({4*left})")
        b = FR + 12 * (t % NSET)
        a(f"v_mfma_f32_32x32x16_bf16 {v(AB,16)}, {v(b,4)}, {v(b+4,4)}, {'0' if t == 0 else v(AB,16)}")
        a(f"v_mfma_f32_16x16x32_bf16 {v(AS,4)}, {v(b,4)}, {v(b+8,4)}, {'0' if t == 0 else v(AS,4)}")
        if t + 3 < 16:
            rd(t + 3)
    a(f"""
    s_mov_b32 s46, {fbits(LOG2E_NEG)}
    v_lshrrev_b32 v{vX0}, 4, v0
    v_and_b32 v{vX1}, 15, v0
    v_mul_u32_u24 v{vX2}, 272, v{vX0}
    v_lshl_add_u32 v{vX2}, v{vX1}, 4, v{vX2}
    v_lshlrev_b32 v{vX0}, 9, v{vX0}
    v_lshl_add_u32 v{vX0}, v{vX1}, 4, v{vX0}
    s_mul_i32 s{sT0}, s{sRT}, {80*512}
    s_lshl_b32 s{sT1}, s{sHALF}, 8
    s_add_u32 s{sT0}, s{sT0}, s{sT1}
    s_add_u32 s{sT0}, s{sT0}, {WS_B}
    v_add_u32 v{vX0}, s{sT0}, v{vX0}
    """)
    stamp(a, cfg, "k1", 5)
    for k in range(10):
        a(f"v_pk_mul_f32 {v(AB+2*k,2)}, {v(AB+2*k,2)}, s[46:47] op_sel_hi:[1,0]")
    for k in range(10):
        a(f"v_cvt_pk_bf16_f32 v{FR+k}, v{AB+2*k}, v{AB+2*k+1}")
    for q in range(4):
        a(f"ds_write_b64 v{vSB}, {v(FR+2*q,2)} offset:{16*q}")
    a(f"""
    ds_write_b64 v{vSS}, {v(FR+8,2)}
    v_add_u32 v{vX1}, 16384, v{vX0}
    v_add_u32 v{vX3}, 32768, v{vX0}
    s_waitcnt lgkmcnt(0)
    s_barrier
    ds_read_b128 v[24:27], v{vX2} offset:{STG}
    ds_read_b128 v[28:31], v{vX2} offset:{STG+8704}
    s_cmp_ge_u32 s{sWAVE}, 4
    s_cbranch_scc1 K1_two
    ds_read_b128 v[32:35], v{vX2} offset:{STG+2*8704}
    s_waitcnt lgkmcnt(0)
    global_store_dwordx4 v{vX3}, v[32:35], s[20:21] {st}
    K1_two:
    s_waitcnt lgkmcnt(0)
    global_store_dwordx4 v{vX0}, v[24:27], s[20:21] {st}
    global_store_dwordx4 v{vX1}, v[28:31], s[20:21] {st}
    """)
    stamp(a, cfg, "k1", 6, wait=True)
    stamp_flush(a, cfg, "k1", 20)
    a("s_endpgm")
    a(f"""
    K1_side:
    v_lshl_or_b32 v{vF}, v{vF+1}, 16, v{vF}
    v_lshl_or_b32 v{vF+1}, v{vF+3}, 16, v{vF+2}
    v_lshl_or_b32 v{vF+2}, v{vF+5}, 16, v{vF+4}
    v_lshl_or_b32 v{vF+3}, v{vF+7}, 16, v{vF+6}
    s_lshl_b32 s{sT0}, s44, 10
    s_add_u32 s{sT0}, s{sT0}, {WS_WF}
    v_add_u32 v{vX0}, s{sT0}, v{vX2}
    global_store_dwordx4 v{vX0}, {v(vF,4)}, s[20:21] {st}
    s_cmp_eq_u32 s{sWAVE}, 8
    s_cbranch_scc1 K1_nooff
    v_lshl_or_b32 v{o0}, v{c0}, 16, v{o0}
    v_lshl_or_b32 v{o0+1}, v{c0+1}, 16, v{o0+1}
    v_lshl_or_b32 v{o0+2}, v{c0+2}, 16, v{o0+2}
    v_lshl_or_b32 v{o0+3}, v{c0+3}, 16, v{o0+3}
    s_lshl_b32 s{sT0}, s2, 10
    s_add_u32 s{sT0}, s{sT0}, {WS_OFF}
    v_add_u32 v{vX1}, s{sT0}, v{vX2}
    global_store_dwordx4 v{vX1}, {v(o0,4)}, s[20:21] {st}
    K1_nooff:
    s_sub_u32 s{sT0}, s{sWAVE}, 8
    s_lshl_b32 s{sT0}, s{sT0}, 10
    v_add_u32 v{vX2}, s{sT0}, v{vX2}
    s_mul_i32 s{sT0}, s2, {REC_STRIDE}
    s_add_u32 s{sT0}, s{sT0}, {WS_REC}
    v_add_u32 v{vX3}, s{sT0}, v{vX2}
    v_cmp_gt_u32 vcc, {REC_STRIDE-6*2048}, v{vX2}
    s_waitcnt lgkmcnt(0)
    s_barrier
    """)
    R = 64
    for i in range(7):
        a(f"ds_read_b128 {v(R+4*i,4)}, v{vX2} offset:{REC+2048*i}")
    for i in range(6):
        if i and i % 2 == 0:
            a(f"v_add_u32 v{vX3}, 4096, v{vX3}")
        a(f"s_waitcnt lgkmcnt({6-i})")
        a(f"global_store_dwordx4 v{vX3}, {v(R+4*i,4)}, s[20:21] offset:{2048*(i&1)} {st}")
    a(f"""
    v_add_u32 v{vX3}, 4096, v{vX3}
    s_and_b64 exec, exec, vcc
    s_cbranch_execz K1_sdone
    s_waitcnt lgkmcnt(0)
    global_store_dwordx4 v{vX3}, {v(R+24,4)}, s[20:21] {st}
    K1_sdone:
    s_barrier
    K1_exit:
    s_endpgm
    """)
    return dict(vgpr=96, sgpr=100 if cfg.get('stamps') else 64, lds=K1_LDS, threads=K1_THREADS, grid=256)
```

```python
from asmlib import Asm, v, s
from common import *

CNT, POSACC, ZERO = 0, 64, 768
MH = 2048
RING = 23296
OPS = RING + 32768
K2_LDS = OPS + 98304
CAP = 192
SLOW_R = CAP // 8


class Alloc:
    def __init__(self, first):
        self.n = first

    def __call__(self, k=1):
        if k > 1 and self.n & 1:
            self.n += 1
        r = self.n
        self.n += k
        return r


def gen_k2(a: Asm, cfg):
    N1 = cfg.get("w1_first", 8)
    ost = cfg.get("out_store", "")
    sWS, sH = 24, 28
    sB, sW, sT0, sT1, sT2 = 32, 33, 34, 35, 36
    sDm, sD0, sD1, sD2, sD3 = 37, 38, 39, 40, 41
    sMask, sK, sWX, sRet = 42, 43, 44, 45
    sJ0, sR, sLast, sTw, sTmax, sFirst, sAdone, sCdone, sOver, sSp = 46, 47, 48, 49, 50, 51, 52, 53, 54, 55
    sV0, sV1, sC4, sL = 56, 58, 60, 62
    sM0, sWO = 64, 65
    al = Alloc(1)
    vL = al()
    vA = [al(), al()]
    vSr, vL16, vLS, vG0, vG1, vR0, vR1, vT0, vT1 = (al() for _ in range(9))
    vMW, vPA, vPOS, vDesc, vHB, vHS, vOB, vOS, vW16 = (al() for _ in range(9))
    P = [al(16), al(16)]
    T = al(16)
    X = al(16)
    M, ACC, BF, FA, S, FB = al(8), al(16), al(8), al(4), al(8), al(4)
    AP, ILO, IHI, WX, CB, CS, HR, WB = al(10), al(4), al(4), al(8), al(16), al(4), al(10), al(64)
    assert T + 16 == X and CB + 16 == CS and al.n <= 256, al.n
    x0, x1, x2, x3, x4, x5, x6, x7 = range(X, X + 8)
    vVal, vPre, vInc, vDG, vBlk = range(HR, HR + 5)
    vOne = X + 15

    def zero_fill():
        a(f"""
        v_mov_b64 {v(T,2)}, 0
        v_mov_b64 {v(T+2,2)}, 0
        v_lshlrev_b32 v{x0}, 4, v0
        v_add_u32 v{x1}, {OPS}, v{x0}
        v_add_u32 v{x2}, {OPS+65536}, v{x0}
        s_lshl_b32 s{sT0}, s{sW}, 12
        s_add_u32 s{sT0}, s{sT0}, {RING}
        v_lshl_add_u32 v{x3}, v{vL}, 3, s{sT0}
        ds_write_b64 v{x3}, {v(T,2)}
        """)
        lab = a.uid("K2_nolow")
        a(f"s_cmp_ge_u32 s{sW}, 2\ns_cbranch_scc1 {lab}\nds_write_b128 v{x0}, {v(T,4)}\n{lab}:")
        for r in range(12):
            a(f"ds_write_b128 v{x1 if r < 8 else x2}, {v(T,4)} offset:{8192*(r&7)}")

    def wload(mtx, lo, hi):
        for t in range(lo, hi):
            if t == lo or t % 4 == 0:
                a(f"s_add_u32 s{sT0}, s{sWO}, {mtx*131072 + (t//4)*4096}")
            a(f"buffer_load_dwordx4 {v(WB+4*t,4)}, v{vW16}, s[{sWS}:{sWS+3}], s{sT0} offen offset:{1024*(t%4)}")

    def gemm40(accB, accS, w_is_a, fr, init0, waits=None):
        def rd(t):
            b = fr + 8 * (t % 4)
            a(f"ds_read_b128 {v(b,4)}, v{vHB} offset:{32*t}")
            a(f"ds_read_b128 {v(b+4,4)}, v{vHS} offset:{32*t}")
        for t in range(3):
            rd(t)
        for t in range(16):
            left = min(15, t + 2) - t
            b = fr + 8 * (t % 4)
            w = v(WB + 4 * t, 4)
            if waits and t in waits:
                a(f"s_waitcnt vmcnt({waits[t]}) lgkmcnt({2*left})")
            else:
                a(f"s_waitcnt lgkmcnt({2*left})")
            cb = "0" if init0 and t == 0 else v(accB, 16)
            cs = "0" if init0 and t == 0 else v(accS, 4)
            if w_is_a:
                a(f"v_mfma_f32_32x32x16_bf16 {v(accB,16)}, {w}, {v(b,4)}, {cb}")
                a(f"v_mfma_f32_16x16x32_bf16 {v(accS,4)}, {w}, {v(b+4,4)}, {cs}")
            else:
                a(f"v_mfma_f32_32x32x16_bf16 {v(accB,16)}, {v(b,4)}, {w}, {cb}")
                a(f"v_mfma_f32_16x16x32_bf16 {v(accS,4)}, {v(b+4,4)}, {w}, {cs}")
            if t + 3 < 16:
                rd(t + 3)

    def next_desc(d):
        a(f"s_ff1_i32_b32 s{sK}, s{sMask}\ns_bitset0_b32 s{sMask}, s{sK}\nv_readlane_b32 s{d}, v{vDesc}, s{sK}")

    def src_read(d):
        a(f"""
        s_and_b32 s{sT0}, s{d}, 0x1ffff
        v_add_u32 v{vSr}, s{sT0}, v{vLS}
        ds_read_u16 v{vT0}, v{vSr}
        ds_read_u16 v{vT1}, v{vSr} offset:256
        """)

    def dma(slot):
        return [f"s_add_u32 m0, s{sM0}, {2048*slot}",
                f"v_lshl_add_u32 v{vT0}, v{vT0}, 9, v{vG0}",
                f"v_lshl_add_u32 v{vT1}, v{vT1}, 9, v{vG1}",
                f"buffer_load_dwordx4 v{vT0}, s[{sWS}:{sWS+3}], 0 offen lds",
                f"buffer_load_dwordx4 v{vT1}, s[{sWS}:{sWS+3}], 0 offen offset:1024 lds"]

    a.label(K2_NAME)
    a(f"""
    s_and_b32 s{sT0}, s2, 7
    s_lshr_b32 s{sT1}, s2, 3
    s_lshl_b32 s{sT0}, s{sT0}, 5
    s_add_u32 s{sB}, s{sT0}, s{sT1}
    s_cmp_ge_u32 s2, 256
    s_cbranch_scc1 K2_exit
    s_cmp_ge_u32 s{sB}, 250
    s_cbranch_scc1 K2_exit
    s_load_dwordx16 s[4:19], s[0:1], 0
    s_load_dwordx2 s[20:21], s[0:1], 64
    s_load_dwordx2 s[{sWS}:{sWS+1}], s[0:1], 80
    """)
    stamp(a, cfg, "k2", 0)
    a(f"""
    v_lshrrev_b32 v{x0}, 6, v0
    v_and_b32 v{vL}, 63, v0
    v_readfirstlane_b32 s{sW}, v{x0}
    s_mov_b32 s{sWS+2}, {WS_END}
    s_mov_b32 s{sWS+3}, 0x20000
    s_mov_b32 s{sH+2}, 5120000
    s_mov_b32 s{sH+3}, 0x20000
    v_lshlrev_b32 v{vW16}, 4, v{vL}
    s_lshl_b32 s{sT0}, s{sW}, 15
    s_lshl_b32 s{sT1}, s{sB}, 2
    s_add_u32 s{sT0}, s{sT0}, s{sT1}
    s_add_u32 s{sT0}, s{sT0}, {WS_OFF}
    v_lshl_add_u32 v{x4}, v{vL}, 10, s{sT0}
    v_lshlrev_b32 v{x5}, 4, v0
    v_lshrrev_b32 v{x0}, 5, v{vL}
    v_and_b32 v{x1}, 31, v{vL}
    s_lshl_b32 s{sT2}, s{sW}, 6
    v_lshl_add_u32 v{x6}, v{x1}, 1, s{sT2}
    v_lshlrev_b32 v{x2}, 9, v{x0}
    v_sub_u32 v{x6}, v{x6}, v{x2}
    v_add_u32 v{x6}, {513*512}, v{x6}
    v_lshl_add_u32 v{x7}, v{x0}, 3, s{sT2}
    s_mul_i32 s{sT0}, s{sB}, 240
    v_min_u32 v{vPOS}, 119, v0
    v_lshl_add_u32 v{vPOS}, v{vPOS}, 1, s{sT0}
    s_lshl_b32 s{sWO}, s{sW}, 14
    s_add_u32 s{sWO}, s{sWO}, {WS_WF}
    s_mul_i32 s{sT1}, s{sB}, 20480
    v_mov_b32 v{vInc}, 0
    s_waitcnt lgkmcnt(0)
    s_mov_b32 exec_hi, 0
    buffer_load_dword v{vInc}, v{x4}, s[{sWS}:{sWS+3}], 0 offen
    s_mov_b32 exec_hi, -1
    s_mov_b32 s{sH}, s4
    s_mov_b32 s{sH+1}, s5
    s_add_u32 s{sT0}, s{sT1}, 8192
    s_add_u32 s{sT2}, s{sT1}, 16384
    buffer_load_dwordx4 {v(P[0],4)}, v{x5}, s[{sH}:{sH+3}], s{sT1} offen
    buffer_load_dwordx4 {v(P[0]+4,4)}, v{x5}, s[{sH}:{sH+3}], s{sT0} offen
    buffer_load_dwordx4 {v(P[0]+8,4)}, v{x5}, s[{sH}:{sH+3}], s{sT2} offen
    """)
    for j in range(4):
        a(f"global_load_ushort v{P[0]+12+j}, v{x6}, s[14:15] offset:{512*j}")
    for q in range(4):
        a(f"global_load_dwordx2 {v(WX+2*q,2)}, v{x7}, s[16:17] offset:{16*q}")
    a(f"global_load_ushort v{vPOS}, v{vPOS}, s[6:7]")
    wload(0, 0, N1)
    zero_fill()
    a(f"""
    s_mov_b32 s{sJ0}, 0
    s_mov_b32 s{sR}, 128
    s_mov_b32 s{sLast}, 1
    s_mov_b32 s{sFirst}, 1
    s_mov_b32 s{sAdone}, 0
    s_mov_b32 s{sCdone}, 0
    s_mov_b32 s{sC4}, 0x11111111
    s_mov_b32 s{sC4+1}, 0x11111111
    s_mov_b32 s{sL}, {fbits(LOG2E_NEG)}
    s_lshl_b32 s{sM0}, s{sW}, 12
    s_add_u32 s{sM0}, s{sM0}, {RING}
    v_add_u32 v{vL16}, {OPS}, v{vW16}
    v_lshrrev_b32 v{x0}, 2, v{vL}
    v_lshlrev_b32 v{x0}, 4, v{x0}
    v_add_u32 v{vLS}, {OPS+512+14}, v{x0}
    v_lshrrev_b32 v{x0}, 4, v{vL}
    v_xor_b32 v{x0}, v{x0}, v{vL}
    v_and_b32 v{x0}, 3, v{x0}
    s_lshl_b32 s{sT2}, s{sW}, 6
    s_add_u32 s{sT0}, s{sT2}, {WS_B}
    v_lshl_add_u32 v{vG0}, v{x0}, 4, s{sT0}
    v_subrev_u32 v{vG1}, 1024, v{vG0}
    v_and_b32 v{x0}, 31, v{vL}
    v_lshrrev_b32 v{x1}, 5, v{vL}
    v_bfe_u32 v{x2}, v{vL}, 2, 2
    v_xor_b32 v{x2}, v{x2}, v{x1}
    v_lshlrev_b32 v{x2}, 4, v{x2}
    v_lshl_add_u32 v{x2}, v{x0}, 6, v{x2}
    v_add_u32 v{vR0}, s{sM0}, v{x2}
    v_xor_b32 v{x2}, 32, v{x2}
    v_add_u32 v{vR1}, s{sM0}, v{x2}
    v_lshrrev_b32 v{x2}, 2, v{x0}
    v_mul_u32_u24 v{x2}, 528, v{x2}
    v_lshl_add_u32 v{x2}, v{x1}, 3, v{x2}
    s_add_u32 s{sT0}, s{sT2}, {MH}
    v_add_u32 v{vMW}, s{sT0}, v{x2}
    v_lshl_add_u32 v{vPA}, v{x0}, 2, {POSACC}
    v_lshlrev_b32 v{x1}, 3, v{x1}
    v_sub_u32 v{x0}, v{x0}, v{x1}
    v_and_b32 v{x1}, 1, v{x0}
    v_lshlrev_b32 v{x1}, 4, v{x1}
    v_mov_b32 v{x2}, 0x3f80
    v_lshlrev_b32 v{x1}, v{x1}, v{x2}
    v_ashrrev_i32 v{x0}, 1, v{x0}
    """)
    for k in range(4):
        a(f"v_cmp_eq_u32 vcc, {k}, v{x0}\nv_cmp_eq_u32 s[{sV0}:{sV0+1}], {8+k}, v{x0}\ns_nop 0")
        a(f"v_cndmask_b32_e64 v{ILO+k}, 0, v{x1}, vcc\nv_cndmask_b32_e64 v{IHI+k}, 0, v{x1}, s[{sV0}:{sV0+1}]")
    node_addrs(a, vL, vHB, vHS, (x0, x1, x2, x3), None, MH, 528, ZERO, sT1)
    out_addrs(a, vL, vOB, vOS, (x0, x1, x2, x3), None, MH, 528, sT2, sT1)
    a(f"""
    v_mul_u32_u24 v{x0}, 43, v{vL}
    v_lshrrev_b32 v{x0}, 8, v{x0}
    v_mul_u32_u24 v{x1}, 6, v{x0}
    v_sub_u32 v{vBlk}, v{vL}, v{x1}
    v_min_u32 v{x0}, 7, v{x0}
    v_lshlrev_b32 v{vDG}, 2, v{x0}
    s_lshl_b32 s{sT0}, s{sW}, 5
    v_add_u32 v{x4}, s{sT0}, v{vL}
    v_mul_u32_u24 v{x4}, {REC_STRIDE}, v{x4}
    v_add_u32 v{x4}, {WS_REC}, v{x4}
    s_waitcnt vmcnt({12+N1})
    """)
    stamp(a, cfg, "k2", 1)
    a(f"""
    v_and_b32 v{x0}, 0xffff, v{vInc}
    v_lshrrev_b32 v{vInc}, 16, v{vInc}
    v_mov_b32 v{vPre}, v{vInc}
    """)
    scan(a, vInc, "v_add_u32", 32)
    a(f"""
    v_sub_u32 v{vPre}, v{vInc}, v{vPre}
    v_readlane_b32 s{sTw}, v{vInc}, 31
    v_sub_u32 v{x0}, v{x0}, v{vPre}
    v_mad_i32_i24 v{vVal}, v{x0}, 20, v{x4}
    """)
    RA, RB = P[1], P[1] + 8
    a(f"""
    K2_expand:
    s_add_u32 s{sT0}, s{sJ0}, s{sR}
    v_cmp_lt_u32 vcc, v{vPre}, v{vInc}
    v_cmp_lt_u32 s[{sV0}:{sV0+1}], s{sJ0}, v{vInc}
    v_cmp_gt_u32 s[{sV1}:{sV1+1}], s{sT0}, v{vPre}
    v_subrev_u32 v{x0}, s{sJ0}, v{vPre}
    v_max_i32 v{x0}, 0, v{x0}
    v_lshl_add_u32 v{x0}, v{x0}, 2, s{sM0}
    v_lshl_add_u32 v{x1}, v{vL}, 2, s{sM0}
    s_and_b64 vcc, vcc, s[{sV0}:{sV0+1}]
    s_and_b64 exec, vcc, s[{sV1}:{sV1+1}]
    ds_write_b32 v{x0}, v{vVal}
    s_mov_b64 exec, -1
    ds_read2st64_b32 {v(x2,2)}, v{x1} offset0:0 offset1:1
    s_sub_i32 s{sT1}, s{sTw}, s{sJ0}
    s_max_i32 s{sT1}, s{sT1}, 0
    s_min_u32 s{sT1}, s{sT1}, s{sR}
    v_add_u32 v{x4}, 64, v{vL}
    v_cmp_gt_u32 s[{sV0}:{sV0+1}], s{sT1}, v{vL}
    v_cmp_gt_u32 s[{sV1}:{sV1+1}], s{sT1}, v{x4}
    v_add_u32 v{x4}, s{sJ0}, v{vL}
    v_mul_u32_u24 v{x4}, 20, v{x4}
    v_mov_b32 v{x5}, 0x7fffff00
    s_waitcnt lgkmcnt(0)
    """)
    scan2(a, x2, x3, "v_max_u32")
    a(f"""
    v_readlane_b32 s{sT0}, v{x2}, 63
    v_add_u32 v{x2}, v{x2}, v{x4}
    v_add_u32 v{x4}, {64*20}, v{x4}
    v_max_u32 v{x3}, s{sT0}, v{x3}
    v_add_u32 v{x3}, v{x3}, v{x4}
    v_cndmask_b32_e64 v{x2}, v{x5}, v{x2}, s[{sV0}:{sV0+1}]
    v_cndmask_b32_e64 v{x3}, v{x5}, v{x3}, s[{sV1}:{sV1+1}]
    buffer_load_dwordx4 {v(RA,4)}, v{x2}, s[{sWS}:{sWS+3}], 0 offen
    buffer_load_dword v{RA+4}, v{x2}, s[{sWS}:{sWS+3}], 0 offen offset:16
    buffer_load_dwordx4 {v(RB,4)}, v{x3}, s[{sWS}:{sWS+3}], 0 offen
    buffer_load_dword v{RB+4}, v{x3}, s[{sWS}:{sWS+3}], 0 offen offset:16
    s_cmp_eq_u32 s{sFirst}, 0
    s_cbranch_scc1 K2_again1
    """)
    stamp(a, cfg, "k2", 2)
    wload(0, N1, 16)
    a(f"""
    v_lshrrev_b32 v{x0}, 5, v0
    v_and_b32 v{x1}, 31, v0
    v_mul_u32_u24 v{x0}, 528, v{x0}
    v_lshl_add_u32 v{x0}, v{x1}, 4, v{x0}
    v_lshrrev_b32 v{x1}, 5, v{vL}
    v_cmp_eq_u32 vcc, 0, v{x1}
    v_mov_b32 v{x1}, s{sL}
    s_waitcnt vmcnt(29)
    ds_write_b128 v{x0}, {v(P[0],4)} offset:{MH}
    ds_write_b128 v{x0}, {v(P[0]+4,4)} offset:{MH+8448}
    s_cmp_ge_u32 s{sW}, 4
    s_cbranch_scc1 K2_h2
    ds_write_b128 v{x0}, {v(P[0]+8,4)} offset:{MH+2*8448}
    K2_h2:
    v_cndmask_b32_e64 v{x1}, 0, v{x1}, vcc
    s_waitcnt vmcnt(25)
    v_lshlrev_b32 v{x2}, 16, v{P[0]+12}
    v_lshlrev_b32 v{x3}, 16, v{P[0]+13}
    v_lshlrev_b32 v{x4}, 16, v{P[0]+14}
    v_lshlrev_b32 v{x5}, 16, v{P[0]+15}
    v_mul_f32 v{x2}, s{sL}, v{x2}
    v_mul_f32 v{x3}, v{x1}, v{x3}
    v_mul_f32 v{x4}, v{x1}, v{x4}
    v_mul_f32 v{x5}, v{x1}, v{x5}
    v_cvt_pk_bf16_f32 v{FB+2}, v{x2}, v{x3}
    v_cvt_pk_bf16_f32 v{FB+3}, v{x4}, v{x5}
    K2_back1:
    v_mov_b32 v{vOne}, 0x3f80
    v_mov_b32 v{x6}, 1
    v_mov_b32 v{x7}, s{sTw}
    v_mov_b32 v{x5}, {CNT+24}
    s_waitcnt lgkmcnt(0)
    s_barrier
    s_mov_b64 exec, 1
    ds_max_u32 v{x5}, v{x7}
    s_mov_b64 exec, -1
    s_waitcnt vmcnt({16-N1})
    """)
    stamp(a, cfg, "k2", 3)
    for R, sv in ((RA, sV0), (RB, sV1)):
        a(f"""
        v_lshrrev_b32 v{R+5}, 1, v{R+3}
        v_and_b32 v{R+5}, 0x1c, v{R+5}
        s_mov_b64 exec, s[{sv}:{sv+1}]
        ds_add_rtn_u32 v{R+6}, v{R+5}, v{x6} offset:{CNT}
        s_mov_b64 exec, -1
        """)
    for R, sv, wait in ((RA, sV0, 1), (RB, sV1, 7)):
        skip = a.uid("K2_noplace")
        a(f"""
        v_mul_u32_u24 v{R+5}, 4608, v{R+5}
        v_bfe_u32 v{x0}, v{R+3}, 2, 1
        v_and_b32 v{x1}, 3, v{R+3}
        v_lshlrev_b32 v{x0}, 9, v{x0}
        v_lshl_add_u32 v{x0}, v{x1}, 1, v{x0}
        v_and_b32 v{x1}, 7, v{R+3}
        v_add_u32 v{R+5}, {OPS}, v{R+5}
        s_waitcnt lgkmcnt(0)
        v_cmp_gt_u32 vcc, {CAP}, v{R+6}
        v_lshrrev_b32 v{x2}, 5, v{R+6}
        v_mul_u32_u24 v{x2}, 3072, v{x2}
        v_add_u32 v{R+5}, v{R+5}, v{x2}
        s_and_b64 exec, vcc, s[{sv}:{sv+1}]
        s_cbranch_execz {skip}
        v_and_b32 v{x2}, 31, v{R+6}
        v_lshl_add_u32 v{x2}, v{x2}, 4, v{R+5}
        ds_write_b64 v{x2}, {v(R,2)} offset:8
        ds_write_b64 v{x2}, {v(R+2,2)} offset:520
        v_add_u32 v{x0}, v{x0}, v{x2}
        ds_write_b16 v{x0}, v{vOne}
        v_lshl_add_u32 v{x1}, v{x1}, 6, v{R+5}
        v_and_b32 v{x2}, 16, v{R+6}
        v_lshl_add_u32 v{x1}, v{x2}, 6, v{x1}
        v_and_b32 v{x2}, 4, v{R+6}
        v_lshl_add_u32 v{x1}, v{x2}, 7, v{x1}
        v_and_b32 v{x2}, 3, v{R+6}
        v_lshl_add_u32 v{x1}, v{x2}, 1, v{x1}
        v_and_b32 v{x2}, 8, v{R+6}
        v_add_u32 v{x1}, v{x1}, v{x2}
        ds_write_b16 v{x1}, v{vOne} offset:1024
        ds_write_b16_d16_hi v{x1}, v{R+2} offset:1040
        ds_write_b16 v{x1}, v{R+4} offset:1056
        ds_write_b16_d16_hi v{x1}, v{R+4} offset:1072
        {skip}:
        s_mov_b64 exec, -1
        """)
    a(f"""
    s_waitcnt lgkmcnt(0)
    s_barrier
    """)
    stamp(a, cfg, "k2", 4)
    a(f"""
    ds_read_b32 v{x0}, v{vDG} offset:{CNT}
    ds_read_b32 v{x1}, v{x5}
    v_mul_u32_u24 v{x2}, 3072, v{vL}
    v_lshlrev_b32 v{x3}, 26, v{vDG}
    v_or_b32 v{x2}, v{x2}, v{x3}
    v_lshlrev_b32 v{x3}, 5, v{vBlk}
    v_cmp_eq_u32 s[{sV0}:{sV0+1}], 0, v{vBlk}
    s_waitcnt lgkmcnt(0)
    v_readfirstlane_b32 s{sT1}, v{x1}
    v_mov_b32 v{x4}, {CAP}
    v_cmp_lt_u32 vcc, v{x4}, v{x0}
    v_sub_u32 v{x0}, v{x0}, v{x3}
    v_add_u32 v{x3}, 7, v{x0}
    v_ashrrev_i32 v{x3}, 3, v{x3}
    v_med3_i32 v{x3}, v{x3}, 1, 4
    s_and_b32 s{sOver}, vcc_lo, 0x3fffffff
    v_cmp_lt_i32 vcc, 0, v{x0}
    v_cmp_ge_i32 s[{sV1}:{sV1+1}], 32, v{x0}
    v_lshl_or_b32 v{x2}, v{x3}, 20, v{x2}
    s_or_b32 s{sMask}, vcc_lo, s{sV0}
    s_and_b32 s{sMask}, s{sMask}, 0x3fffffff
    v_mov_b32 v{x3}, 0x1000000
    v_cndmask_b32_e64 v{x3}, 0, v{x3}, s[{sV1}:{sV1+1}]
    v_cmp_gt_u32 vcc, 30, v{vL}
    v_or_b32 v{x2}, v{x2}, v{x3}
    s_cmp_eq_u32 s{sFirst}, 0
    s_cbranch_scc1 K2_notfirst
    s_mov_b32 s{sTmax}, s{sT1}
    s_cmp_gt_u32 s{sT1}, 128
    s_cselect_b32 s{sT1}, 1, 0
    s_or_b32 s{sOver}, s{sOver}, s{sT1}
    K2_notfirst:
    v_cndmask_b32_e64 v{vDesc}, 0, v{x2}, vcc
    s_mov_b32 s{sFirst}, 0
    s_cmp_lg_u32 s{sOver}, 0
    s_cbranch_scc1 K2_over1
    """)
    next_desc(sD1)
    next_desc(sD2)
    next_desc(sD3)
    src_read(sD1)
    a("s_waitcnt lgkmcnt(0)")
    a("\n".join(dma(0)))
    src_read(sD2)
    a("s_waitcnt lgkmcnt(0)")
    a("\n".join(dma(1)))
    a(f"""
    K2_back2:
    s_cmp_lg_u32 s{sAdone}, 0
    s_cbranch_scc1 K2_adone
    """)
    stamp(a, cfg, "k2", 5)
    gemm40(P[0], ACC, False, T, True, waits={N1 + k: 4 + (15 - N1 - k) for k in range(0, 16 - N1, 2)} | {N1 + k + 1: 4 + (14 - N1 - k) for k in range(0, 16 - N1, 2)})
    a(f"s_mov_b32 s{sAdone}, 1\ns_nop 9")
    for k in range(8):
        a(f"v_pk_mul_f32 {v(P[0]+2*k,2)}, {v(P[0]+2*k,2)}, s[{sL}:{sL+1}] op_sel_hi:[1,0]")
    for k in range(2):
        a(f"v_pk_mul_f32 {v(ACC+2*k,2)}, {v(ACC+2*k,2)}, s[{sL}:{sL+1}] op_sel_hi:[1,0]")
    for k in range(8):
        a(f"v_cvt_pk_bf16_f32 v{AP+k}, v{P[0]+2*k}, v{P[0]+2*k+1}")
    for k in range(2):
        a(f"v_cvt_pk_bf16_f32 v{AP+8+k}, v{ACC+2*k}, v{ACC+2*k+1}")
    a(f"""
    K2_adone:
    s_cmp_lg_u32 s{sOver}, 0
    s_cbranch_scc1 K2_slowstart
    v_mov_b64 {v(FB,2)}, {v(AP,2)}
    """)
    for k in range(4):
        a(f"v_mov_b64 {v(M+2*k,2)}, 0\nv_mov_b64 {v(S+2*k,2)}, 0")
    for k in range(8):
        a(f"v_mov_b64 {v(ACC+2*k,2)}, 0")
    a(f"""
    s_mov_b32 s{sD0}, 0
    s_mov_b32 s{sWX}, 0
    s_cmp_lg_u32 s{sJ0}, 0
    s_cbranch_scc1 K2_reload0
    K2_back3:
    """)
    stamp(a, cfg, "k2", 6)

    def head_reads(p):
        a(f"""
        s_and_b32 s{sT0}, s{sD1}, 0x1ffff
        v_add_u32 v{vA[1-p]}, s{sT0}, v{vL16}
        ds_read_b128 {v(BF,4)}, v{vR0} offset:{2048*(1-p)}
        ds_read_b128 {v(BF+4,4)}, v{vR1} offset:{2048*(1-p)}
        ds_read_b128 {v(FA,4)}, v{vA[1-p]}
        """)
        src_read(sD3)

    def pre_mfma(p):
        Q = v(P[1 - p], 16)
        return [f"v_mfma_f32_32x32x16_bf16 {Q}, {v(FA,4)}, {v(FB,4)}, 0",
                f"v_mfma_f32_32x32x16_bf16 {Q}, {v(BF,4)}, {v(ILO,4)}, {Q}",
                f"v_mfma_f32_32x32x16_bf16 {Q}, {v(BF+4,4)}, {v(IHI,4)}, {Q}"]

    agg = [f"v_mfma_f32_32x32x16_bf16 {v(ACC,16)}, {v(M,4)}, {v(S,4)}, {v(ACC,16)}",
           f"v_mfma_f32_32x32x16_bf16 {v(ACC,16)}, {v(M+4,4)}, {v(S+4,4)}, {v(ACC,16)}"]

    def shift():
        a(f"""
        s_mov_b32 s{sDm}, s{sD0}
        s_mov_b32 s{sD0}, s{sD1}
        s_mov_b32 s{sD1}, s{sD2}
        s_mov_b32 s{sD2}, s{sD3}
        """)
        next_desc(sD3)

    a("s_waitcnt vmcnt(2)")
    head_reads(1)
    a("s_waitcnt lgkmcnt(0)")
    a("\n".join(dma(0)))
    a("\n".join(pre_mfma(1)))
    a(f"s_cmp_eq_u32 s{sLast}, 0\ns_cbranch_scc1 K2_nowh1")
    wload(1, 0, 16)
    a(f"s_mov_b32 s{sWX}, 2\nK2_nowh1:")
    shift()
    stamp(a, cfg, "k2", 7)

    def body(p, nq):
        n = 4 * nq
        Pp = P[p]
        E = [f"v_exp_f32 v{T+i}, v{Pp+i}" for i in range(n)]
        A = [f"v_pk_add_f32 {v(T+i,2)}, {v(T+i,2)}, 1.0 op_sel_hi:[1,0]" for i in range(0, n, 2)]
        Rr = [f"v_rcp_f32 v{T+i}, v{T+i}" for i in range(n)]
        U = [f"v_pk_mul_f32 {v(T+i,2)}, {v(T+i,2)}, {v(Pp+i,2)}" for i in range(0, n, 2)]
        C = [f"v_cvt_pk_bf16_f32 v{M+i//2}, v{T+i}, v{T+i+1}" for i in range(0, n, 2)]
        sread = [f"ds_read_b128 {v(S,4)}, v{vA[p]} offset:1024", f"ds_read_b128 {v(S+4,4)}, v{vA[p]} offset:2048"]
        nod = f"K2_nodma_{p}_{nq}"
        dm = [f"s_cmp_eq_u32 s{sD3}, 0", f"s_cbranch_scc1 {nod}", "s_waitcnt lgkmcnt(2)"] + dma(1 - p) + [f"{nod}:"]
        if nq == 1:
            seq = E[:2] + [agg[0]] + E[2:4] + [agg[1]] + sread + dm
        else:
            seq = E[:2] + [agg[0]] + E[2:5] + [agg[1]] + sread + E[5:8] + dm + E[8:]
        seq += A
        seq += [f"s_bitcmp1_b32 s{sD0}, 24", f"s_cbranch_scc1 K2_rot_{p}_{nq}", f"K2_rotb_{p}_{nq}:", "s_waitcnt lgkmcnt(0)"]
        pm = pre_mfma(p)
        if nq == 1:
            seq += [pm[0]] + Rr[:2] + [pm[1]] + Rr[2:4] + [pm[2]]
        else:
            seq += [pm[0]] + Rr[:3] + [pm[1]] + Rr[3:6] + [pm[2]] + Rr[6:]
        seq += U + C
        a("\n".join(seq))

    def rot(p, nq):
        a(f"K2_rot_{p}_{nq}:\ns_lshr_b32 s{sT0}, s{sD0}, 28")
        for g in range(4):
            lab = a.uid("K2_rn")
            a(f"s_cmp_lg_u32 s{sT0}, {g}\ns_cbranch_scc1 {lab}\nv_mov_b64 {v(FB,2)}, {v(AP+2*g+2,2)}\n{lab}:")
        a(f"s_branch K2_rotb_{p}_{nq}")

    a(".p2align 3")
    for p in (0, 1):
        a(f"""
        K2_tile{p}:
        s_cmp_eq_u32 s{sD2}, 0
        s_cselect_b32 s{sT0}, 1, s{sWX}
        s_cmp_lg_u32 s{sT0}, 0
        s_cbranch_scc1 K2_wait{p}
        s_waitcnt vmcnt(2)
        K2_waitb{p}:
        """)
        head_reads(p)
        a(f"s_bitcmp0_b32 s{sD0}, 22\ns_cbranch_scc1 K2_part{p}")
        body(p, 4)
        a(f"""
        K2_tail{p}:
        s_mov_b32 s{sRet}, {p}
        s_bitcmp1_b32 s{sDm}, 24
        s_cbranch_scc1 K2_flush
        K2_tailb{p}:
        """)
        shift()
        if p == 0:
            a(f"s_cmp_eq_u32 s{sD0}, 0\ns_cbranch_scc1 K2_end")
        else:
            a(f"s_cmp_lg_u32 s{sD0}, 0\ns_cbranch_scc1 K2_tile0")
    a(f"""
    K2_end:
    {agg[0]}
    {agg[1]}
    s_mov_b32 s{sRet}, 2
    s_nop 9
    """)
    a(f"""
    K2_flush:
    s_cmp_eq_u32 s{sLast}, 0
    s_cbranch_scc1 K2_spill
    s_cmp_eq_u32 s{sCdone}, 0
    s_cbranch_scc1 K2_cpart
    K2_flush2:
    """)
    for k in range(8):
        a(f"v_cvt_pk_bf16_f32 v{T+k}, v{ACC+2*k}, v{ACC+2*k+1}")
    a(f"s_mov_b64 exec, s[{sC4}:{sC4+1}]")
    for q in range(4):
        a(f"ds_write_b64 v{vMW}, {v(T+2*q,2)} offset:{16*q}")
    a("s_mov_b64 exec, -1")
    for k in range(8):
        a(f"v_dot2_f32_bf16 v{x0}, v{T+k}, v{WX+k}, {'0' if k == 0 else v(x0)}")
    a(f"v_add_u32 v{vMW}, {8*528}, v{vMW}")
    for k in range(8):
        a(f"v_mov_b64 {v(ACC+2*k,2)}, 0")
    a(f"""
    ds_add_f32 v{vPA}, v{x0}
    v_add_u32 v{vPA}, 128, v{vPA}
    s_cmp_lg_u32 s{sJ0}, 0
    s_cbranch_scc1 K2_reload
    K2_flushb:
    s_cmp_eq_u32 s{sRet}, 0
    s_cbranch_scc1 K2_tailb0
    s_cmp_eq_u32 s{sRet}, 1
    s_cbranch_scc1 K2_tailb1
    s_cmp_eq_u32 s{sLast}, 0
    s_cbranch_scc1 K2_nextpass
    """)
    stamp(a, cfg, "k2", 8)
    a("s_waitcnt vmcnt(0) lgkmcnt(0)\ns_barrier")
    stamp(a, cfg, "k2", 9)
    gemm40(CB, CS, True, P[0], False)
    a(f"""
    v_min_u32 v{x0}, 119, v0
    v_mul_u32_u24 v{x1}, 171, v{x0}
    v_lshrrev_b32 v{x1}, 9, v{x1}
    v_add3_u32 v{x1}, v{x0}, v{x1}, 1
    v_lshlrev_b32 v{x1}, 2, v{x1}
    ds_read_b32 v{x7}, v{x1} offset:{POSACC}
    s_mov_b32 s{sT2}, {fbits(LN2_NEG)}
    v_lshrrev_b32 v{x2}, 5, v0
    v_and_b32 v{x3}, 31, v0
    v_mul_u32_u24 v{x2}, 528, v{x2}
    v_lshl_add_u32 v{x2}, v{x3}, 4, v{x2}
    v_add_u32 v{x2}, {OPS}, v{x2}
    s_mul_i32 s{sT1}, s{sB}, 20480
    v_lshl_add_u32 v{x3}, v0, 4, s{sT1}
    """)
    stamp(a, cfg, "k2", 10)
    E0 = P[0]
    for i in range(20):
        a(f"v_exp_f32 v{E0+i}, v{CB+i}")
    for i in range(0, 20, 2):
        a(f"v_pk_add_f32 {v(E0+i,2)}, {v(E0+i,2)}, 1.0 op_sel_hi:[1,0]")
    for i in range(20):
        a(f"v_rcp_f32 v{E0+i}, v{E0+i}")
    for i in range(0, 20, 2):
        a(f"v_pk_mul_f32 {v(E0+i,2)}, {v(E0+i,2)}, {v(CB+i,2)}")
    for i in range(10):
        a(f"v_lshlrev_b32 v{CB+2*i}, 16, v{HR+i}\nv_and_b32 v{CB+2*i+1}, 0xffff0000, v{HR+i}")
    for i in range(0, 20, 2):
        a(f"v_pk_fma_f32 {v(E0+i,2)}, {v(E0+i,2)}, s[{sT2}:{sT2+1}], {v(CB+i,2)} op_sel_hi:[1,0,1]")
    for i in range(10):
        a(f"v_cvt_pk_bf16_f32 v{T+i}, v{E0+2*i}, v{E0+2*i+1}")
    for q in range(4):
        a(f"ds_write_b64 v{vOB}, {v(T+2*q,2)} offset:{OPS-MH+16*q}")
    a(f"""
    ds_write_b64 v{vOS}, {v(T+8,2)} offset:{OPS-MH}
    v_lshlrev_b32 v{vPOS}, 16, v{vPOS}
    s_mul_i32 s{sT0}, s{sB}, 240
    s_add_u32 s{sT0}, s{sT0}, 5120000
    v_lshl_add_u32 v{x0}, v{x0}, 1, s{sT0}
    v_add_u32 v{x4}, 8192, v{x3}
    v_add_u32 v{x5}, 16384, v{x3}
    s_waitcnt lgkmcnt(0)
    s_barrier
    ds_read_b128 {v(P[0],4)}, v{x2}
    ds_read_b128 {v(P[0]+4,4)}, v{x2} offset:8448
    v_fma_f32 v{x7}, v{x7}, s{sT2}, v{vPOS}
    v_cvt_pk_bf16_f32 v{x7}, v{x7}, v{x7}
    s_cmp_ge_u32 s{sW}, 4
    s_cbranch_scc1 K2_o2
    ds_read_b128 {v(P[0]+8,4)}, v{x2} offset:{2*8448}
    s_cmp_ge_u32 s{sW}, 2
    s_cbranch_scc1 K2_o3
    v_cmp_gt_u32 vcc, 120, v0
    s_mov_b64 exec, vcc
    global_store_short v{x0}, v{x7}, s[20:21] {ost}
    s_mov_b64 exec, -1
    K2_o3:
    s_waitcnt lgkmcnt(0)
    global_store_dwordx4 v{x5}, {v(P[0]+8,4)}, s[20:21] {ost}
    K2_o2:
    s_waitcnt lgkmcnt(0)
    global_store_dwordx4 v{x3}, {v(P[0],4)}, s[20:21] {ost}
    global_store_dwordx4 v{x4}, {v(P[0]+4,4)}, s[20:21] {ost}
    """)
    stamp(a, cfg, "k2", 11)
    stamp(a, cfg, "k2", 12, wait=True)
    stamp_flush(a, cfg, "k2", sWS)
    a("K2_exit:\ns_endpgm")

    for p in (0, 1):
        a(f"""
        K2_wait{p}:
        s_cmp_eq_u32 s{sD2}, 0
        s_cbranch_scc1 K2_waitz{p}
        s_waitcnt vmcnt(18)
        s_sub_u32 s{sWX}, s{sWX}, 1
        s_branch K2_waitb{p}
        K2_waitz{p}:
        s_waitcnt vmcnt(0)
        s_branch K2_waitb{p}
        """)
        rot(p, 4)
        a(f"""
        K2_part{p}:
        s_bitcmp0_b32 s{sD0}, 21
        s_cbranch_scc1 K2_part{p}_1
        s_bitcmp0_b32 s{sD0}, 20
        s_cbranch_scc1 K2_part{p}_2
        """)
        for nq in (3, 2, 1):
            a(f"K2_part{p}_{nq}:")
            body(p, nq)
            a(f"s_branch K2_tail{p}")
            rot(p, nq)
    a(f"K2_cpart:\ns_waitcnt vmcnt(4)")
    gemm40(CB, CS, True, T, True)
    for q in range(4):
        a(f"ds_read_b64 {v(HR+2*q,2)}, v{vOB} offset:{16*q}")
    a(f"ds_read_b64 {v(HR+8,2)}, v{vOS}")
    a(f"s_mov_b32 s{sCdone}, 1\ns_mov_b32 s{sWX}, 2\ns_waitcnt lgkmcnt(0)\ns_barrier")
    wload(2, 0, 16)
    for k in range(10):
        a(f"v_pk_mul_f32 {v(CB+2*k,2)}, {v(CB+2*k,2)}, s[{sL}:{sL+1}] op_sel_hi:[1,0]")
    a("s_branch K2_flush2")

    def spill_addr(gexpr_reg):
        a(f"""
        s_lshl_b32 s{sSp}, s2, 3
        s_add_u32 s{sSp}, s{sSp}, s{sW}
        s_mul_i32 s{sSp}, s{sSp}, 5
        s_add_u32 s{sSp}, s{sSp}, s{gexpr_reg}
        s_lshl_b32 s{sSp}, s{sSp}, 12
        s_add_u32 s{sSp}, s{sSp}, {WS_SPILL}
        """)
    a(f"""
    K2_again1:
    s_waitcnt vmcnt(0)
    s_branch K2_back1
    K2_over1:
    s_waitcnt vmcnt(0)
    s_branch K2_back2
    K2_slowstart:
    s_mov_b32 s{sR}, {SLOW_R}
    s_branch K2_setlast
    K2_nextpass:
    s_add_u32 s{sJ0}, s{sJ0}, {SLOW_R}
    K2_setlast:
    s_add_u32 s{sT0}, s{sJ0}, {SLOW_R}
    s_cmp_ge_u32 s{sT0}, s{sTmax}
    s_cselect_b32 s{sLast}, 1, 0
    s_waitcnt vmcnt(0) lgkmcnt(0)
    s_barrier
    """)
    zero_fill()
    a("s_branch K2_expand")
    a(f"K2_spill:\ns_lshr_b32 s{sT0}, s{sDm}, 28")
    spill_addr(sT0)
    for k in range(4):
        a(f"buffer_store_dwordx4 {v(ACC+4*k,4)}, v{vW16}, s[{sWS}:{sWS+3}], s{sSp} offen offset:{1024*k} sc1")
    a("s_waitcnt vmcnt(0)")
    for k in range(8):
        a(f"v_mov_b64 {v(ACC+2*k,2)}, 0")
    a(f"""
    s_cmp_eq_u32 s{sJ0}, 0
    s_cbranch_scc1 K2_flushb
    K2_reload:
    s_lshr_b32 s{sT0}, s{sDm}, 28
    s_add_u32 s{sT0}, s{sT0}, 1
    s_cmp_ge_u32 s{sT0}, 5
    s_cbranch_scc1 K2_flushb
    """)
    spill_addr(sT0)
    for k in range(4):
        a(f"buffer_load_dwordx4 {v(ACC+4*k,4)}, v{vW16}, s[{sWS}:{sWS+3}], s{sSp} offen offset:{1024*k} sc1")
    a(f"s_waitcnt vmcnt(0)\ns_branch K2_flushb")
    a(f"K2_reload0:\ns_mov_b32 s{sT0}, 0")
    spill_addr(sT0)
    for k in range(4):
        a(f"buffer_load_dwordx4 {v(ACC+4*k,4)}, v{vW16}, s[{sWS}:{sWS+3}], s{sSp} offen offset:{1024*k} sc1")
    a(f"s_waitcnt vmcnt(0)\ns_branch K2_back3")
    return dict(vgpr=((al.n + 7) // 8) * 8, sgpr=100 if cfg.get("stamps") else 72, lds=K2_LDS, threads=512, grid=256)
```

```python
import sys, json, os
sys.path.insert(0, os.path.dirname(os.path.abspath(__file__)))
from asmlib import Asm, check_hazards
from common import *
from k1 import gen_k1
from k2 import gen_k2

HEADER = open("cdna_kernels/%s.s.ref" % NAME).read().split("; Override launch geometry")[0]

def kd(name, r):
    return f""".p2align 6
.amdhsa_kernel {name}
  .amdhsa_next_free_vgpr {r['vgpr']}
  .amdhsa_next_free_sgpr {r['sgpr']}
  .amdhsa_accum_offset {r['vgpr']}
  .amdhsa_group_segment_fixed_size 0
  .amdhsa_kernarg_size 88
  .amdhsa_user_sgpr_count 2
  .amdhsa_user_sgpr_kernarg_segment_ptr 1
  .amdhsa_system_sgpr_workgroup_id_x 1
  .amdhsa_float_denorm_mode_32 3
.end_amdhsa_kernel
"""

def build(cfg):
    ks = []
    body = ""
    for name, gen in ((K1_NAME, gen_k1), (K2_NAME, gen_k2)):
        a = Asm()
        r = gen(a, cfg)
        probs = check_hazards(a.lines)
        for p in probs:
            print(name, p, file=sys.stderr)
        if probs and not cfg.get("ignore_hazards"):
            raise SystemExit("hazards found")
        body += f".globl {name}\n.p2align 8\n.type {name},@function\n" + a.text()
        ks.append((name, r))
    txt = HEADER
    txt += "; Two launches: prep (B' table, bucket sort of the edges, weight fragments) and the edge/node kernel.\n"
    for name, r in ks:
        txt += f"; @launch kernel={name} grid=({r['grid']},1,1) block=({r['threads']},1,1) lds={r['lds']}\n"
    for i in range(cfg.get("extra_empty", 0)):
        txt += f"; @launch kernel=egnn_nop_kernel grid=(256,1,1) block=(64,1,1) lds=0\n"
    txt += '.amdgcn_target "amdgcn-amd-amdhsa--gfx950"\n.text\n' + body
    if cfg.get("extra_empty"):
        txt += ".globl egnn_nop_kernel\n.p2align 8\n.type egnn_nop_kernel,@function\negnn_nop_kernel:\n" + cfg.get("extra_body", "") + "    s_endpgm\n"
        ks.append(("egnn_nop_kernel", dict(vgpr=8, sgpr=16)))
    txt += '.section .rodata,"a"\n' + "".join(kd(n, r) for n, r in ks)
    return txt

if __name__ == "__main__":
    out = sys.argv[1]
    cfg = json.loads(sys.argv[2]) if len(sys.argv) > 2 else {}
    open(out, "w").write(build(cfg))
    print("wrote", out)
```

```python
from asmlib import Asm, v, s
from common import *

HIST, ZERO, STARTS, REC = 0, 1024, 1536, 2560
STG = REC + REC_STRIDE
HT = STG + 80 * 272
WT = HT + 80 * 528
K1_LDS = WT + 65536
K1_THREADS = 640


def gen_k1(a: Asm, cfg):
    st = cfg.get("k1_store", "sc1")
    stb = cfg.get("k1_store_b", st)
    sWAVE, sRT, sHALF, sT0, sT1, sT2 = 36, 37, 38, 39, 42, 43
    sEDGE = 40
    sPOS = 24
    vT, vL = 0, 1
    vDST, vSRC, vEA = 2, 3, 4
    vX0, vX1, vX2, vX3 = 6, 7, 8, 9
    vPD, vPS = 10, 12
    vBK, vDL, vRK = 14, 15, 16
    vHA = 17
    vH = 20
    vF = 36
    vC = 44
    a.label(K1_NAME)
    a(f"""
    s_cmp_ge_u32 s2, 256
    s_cbranch_scc1 K1_exit
    s_load_dwordx16 s[4:19], s[0:1], 0
    s_load_dwordx2 s[20:21], s[0:1], 80
    """)
    stamp(a, cfg, "k1", 0)
    a(f"""
    v_lshrrev_b32 v{vX0}, 6, v0
    v_and_b32 v{vL}, 63, v0
    v_readfirstlane_b32 s{sWAVE}, v{vX0}
    v_lshlrev_b32 v{vX1}, 2, v0
    v_mov_b32 v{vX2}, 0
    v_cmp_gt_u32 vcc, 625, v0
    s_cmp_ge_u32 s{sWAVE}, 6
    s_cbranch_scc1 K1_nozero
    ds_write_b32 v{vX1}, v{vX2}
    K1_nozero:
    s_mov_b64 s[{sEDGE}:{sEDGE+1}], vcc
    s_and_b32 s{sT0}, s2, 7
    s_lshr_b32 s{sT1}, s2, 3
    s_and_b32 s{sHALF}, s{sT1}, 1
    s_lshr_b32 s{sT1}, s{sT1}, 1
    s_lshl_b32 s{sT1}, s{sT1}, 3
    s_add_u32 s{sRT}, s{sT1}, s{sT0}
    s_min_u32 s{sRT}, s{sRT}, 124
    s_mul_i32 s{sT0}, s2, 625
    v_min_u32 v{vX0}, 624, v0
    v_add_u32 v{vX0}, s{sT0}, v{vX0}
    v_lshlrev_b32 v{vX1}, 2, v{vX0}
    v_lshlrev_b32 v{vX2}, 3, v{vX0}
    s_mul_i32 s{sT0}, s{sRT}, 80
    s_lshl_b32 s{sT1}, s{sWAVE}, 3
    s_add_u32 s{sT0}, s{sT0}, s{sT1}
    s_lshl_b32 s{sT0}, s{sT0}, 9
    v_lshl_add_u32 v{vX3}, v{vL}, 4, s{sT0}
    s_mov_b32 s{sPOS+2}, 60000
    s_mov_b32 s{sPOS+3}, 0x20000
    s_waitcnt lgkmcnt(0)
    global_load_dword v{vDST}, v{vX1}, s[12:13]
    global_load_dword v{vSRC}, v{vX1}, s[10:11]
    global_load_dwordx2 v[{vEA}:{vEA+1}], v{vX2}, s[8:9]
    """)
    for i in range(4):
        a(f"global_load_dwordx4 {v(vH+4*i,4)}, v{vX3}, s[4:5] offset:{1024*i}")
    a(f"""
    s_mov_b32 s{sPOS}, s6
    s_mov_b32 s{sPOS+1}, s7
    s_cmp_ge_u32 s{sWAVE}, 8
    s_cbranch_scc1 K1_fragload
    """)
    a(f"""
    v_lshrrev_b32 v{vX0}, 4, v{vL}
    v_and_b32 v{vX1}, 15, v{vL}
    v_lshlrev_b32 v{vX2}, 2, v{vX0}
    v_xor_b32 v{vX1}, v{vX1}, v{vX2}
    v_lshlrev_b32 v{vX1}, 4, v{vX1}
    v_lshl_add_u32 v{vX1}, v{vX0}, 9, v{vX1}
    s_lshl_b32 s{sT0}, s{sWAVE}, 14
    s_lshl_b32 s{sT1}, s{sHALF}, 8
    s_add_u32 s{sT0}, s{sT0}, s{sT1}
    s_add_u32 s{sT0}, s{sT0}, {256*512}
    v_add_u32 v{vX1}, s{sT0}, v{vX1}
    s_lshl_b32 s{sT0}, s{sWAVE}, 13
    s_add_u32 m0, s{sT0}, {WT}
    s_nop 0
    """)
    for i in range(8):
        if i == 4:
            a(f"s_add_u32 m0, s{sT0}, {WT+4096}")
            a(f"v_add_u32 v{vX1}, {1024+4096}, v{vX1}")
        elif i:
            a(f"v_add_u32 v{vX1}, 1024, v{vX1}")
        a(f"global_load_lds_dwordx4 v{vX1}, s[14:15] offset:{1024*(i&3)}")
    a("s_branch K1_loaded")
    a(f"""
    K1_fragload:
    s_lshl_b32 s{sT0}, s2, 1
    s_add_u32 s{sT0}, s{sT0}, s{sWAVE}
    s_sub_u32 s{sT0}, s{sT0}, 8
    s_sub_u32 s{sT1}, s{sT0}, 128
    s_cmp_ge_u32 s{sT0}, 384
    s_cselect_b32 s44, s{sT1}, s{sT0}
    s_cmp_lt_u32 s44, 128
    s_cselect_b32 s46, s14, s18
    s_cselect_b32 s47, s15, s19
    s_cmp_ge_u32 s44, 256
    s_cselect_b32 s{sT0}, {256*512}, 0
    s_and_b32 s{sT1}, s44, 15
    s_lshl_b32 s{sT1}, s{sT1}, 13
    s_add_u32 s{sT0}, s{sT0}, s{sT1}
    s_bfe_u32 s{sT1}, s44, 0x30004
    s_lshl_b32 s{sT1}, s{sT1}, 6
    s_add_u32 s{sT0}, s{sT0}, s{sT1}
    v_lshrrev_b32 v{vX0}, 5, v{vL}
    v_and_b32 v{vX1}, 31, v{vL}
    v_lshlrev_b32 v{vX0}, 12, v{vX0}
    v_lshl_add_u32 v{vX1}, v{vX1}, 1, v{vX0}
    v_add_u32 v{vX1}, s{sT0}, v{vX1}
    s_lshl_b32 s45, s2, 1
    s_add_u32 s45, s45, s{sWAVE}
    s_sub_u32 s45, s45, 392
    s_cmp_ge_u32 s45, 8
    s_cbranch_scc1 K1_nokc
    v_lshrrev_b32 v{vX0}, 5, v{vL}
    v_and_b32 v{vX1}, 31, v{vL}
    v_lshlrev_b32 v{vX0}, 9, v{vX0}
    s_lshl_b32 s{sT0}, s45, 6
    s_add_u32 s{sT0}, s{sT0}, {509*512}
    v_lshl_add_u32 v{vX1}, v{vX1}, 1, s{sT0}
    v_sub_u32 v{vX1}, v{vX1}, v{vX0}
    s_mov_b32 s46, s14
    s_mov_b32 s47, s15
    K1_nokc:
    """)
    for j in range(8):
        a(f"global_load_ushort v{vF+j}, v{vX1}, s[46:47] offset:{512*j}")
    a(f"""
    K1_loaded:
    s_barrier
    v_lshrrev_b32 v{vX0}, 5, v{vL}
    v_and_b32 v{vX1}, 31, v{vL}
    s_mul_i32 s{sT0}, s{sWAVE}, {8*528}
    s_add_u32 s{sT0}, s{sT0}, {HT}
    v_mul_u32_u24 v{vX0}, 528, v{vX0}
    v_lshl_add_u32 v{vX1}, v{vX1}, 4, s{sT0}
    v_add_u32 v{vHA}, v{vX0}, v{vX1}
    v_mov_b32 v{vX3}, 1
    s_waitcnt vmcnt(13)
    """)
    stamp(a, cfg, "k1", 1)
    a(f"""
    v_mul_u32_u24 v{vX0}, 6, v{vDST}
    v_mul_u32_u24 v{vX1}, 6, v{vSRC}
    v_mul_u32_u24 v{vBK}, {52429}, v{vDST}
    v_and_b32 v{vX0}, -4, v{vX0}
    v_and_b32 v{vX1}, -4, v{vX1}
    buffer_load_dwordx2 v[{vPD}:{vPD+1}], v{vX0}, s[{sPOS}:{sPOS+3}], 0 offen
    buffer_load_dwordx2 v[{vPS}:{vPS+1}], v{vX1}, s[{sPOS}:{sPOS+3}], 0 offen
    v_lshrrev_b32 v{vBK}, 21, v{vBK}
    v_mul_u32_u24 v{vDL}, 40, v{vBK}
    v_lshlrev_b32 v{vBK}, 2, v{vBK}
    v_sub_u32 v{vDL}, v{vDST}, v{vDL}
    s_mov_b64 exec, s[{sEDGE}:{sEDGE+1}]
    ds_add_rtn_u32 v{vRK}, v{vBK}, v{vX3}
    s_mov_b64 exec, -1
    v_lshl_or_b32 v{vDL}, v{vSRC}, 16, v{vDL}
    """)
    for i in range(4):
        a(f"s_waitcnt vmcnt({13-i})")
        a(f"ds_write_b128 v{vHA}, {v(vH+4*i,4)} offset:{1056*i}")
    a(f"""
    v_lshlrev_b32 v{vX2}, 4, v{vL}
    s_waitcnt lgkmcnt(0)
    s_barrier
    """)
    stamp(a, cfg, "k1", 2)
    c0, sm, inc, o0 = vC, vC + 4, vC + 5, vC + 8
    a(f"""
    ds_read_b128 {v(c0,4)}, v{vX2} offset:{HIST}
    s_waitcnt lgkmcnt(0)
    v_add3_u32 v{sm}, v{c0}, v{c0+1}, v{c0+2}
    v_add_u32 v{sm}, v{sm}, v{c0+3}
    v_mov_b32 v{inc}, v{sm}
    """)
    scan(a, inc, "v_add_u32", 64)
    a(f"""
    v_sub_u32 v{o0}, v{inc}, v{sm}
    v_add_u32 v{o0+1}, v{o0}, v{c0}
    v_add_u32 v{o0+2}, v{o0+1}, v{c0+1}
    v_add_u32 v{o0+3}, v{o0+2}, v{c0+2}
    ds_write_b128 v{vX2}, {v(o0,4)} offset:{STARTS}
    ds_read_b32 v{vBK}, v{vBK} offset:{STARTS}
    v_and_b32 v{vX0}, 1, v{vDST}
    v_and_b32 v{vX1}, 1, v{vSRC}
    v_lshlrev_b32 v{vX0}, 4, v{vX0}
    v_lshlrev_b32 v{vX1}, 4, v{vX1}
    s_waitcnt vmcnt(0)
    """)
    stamp(a, cfg, "k1", 3)
    t0, t1, t2, t3 = vH, vH + 1, vH + 2, vH + 3
    t4, t5 = vH + 4, vH + 5
    HI = "0xffff0000"
    a(f"""
    v_alignbit_b32 v{vPD}, v{vPD+1}, v{vPD}, v{vX0}
    v_alignbit_b32 v{vPS}, v{vPS+1}, v{vPS}, v{vX1}
    v_lshrrev_b32 v{vPD+1}, v{vX0}, v{vPD+1}
    v_lshrrev_b32 v{vPS+1}, v{vX1}, v{vPS+1}
    v_lshlrev_b32 v{t0}, 16, v{vPD}
    v_lshlrev_b32 v{t1}, 16, v{vPS}
    v_and_b32 v{t2}, {HI}, v{vPD}
    v_and_b32 v{t3}, {HI}, v{vPS}
    v_lshlrev_b32 v{t4}, 16, v{vPD+1}
    v_lshlrev_b32 v{t5}, 16, v{vPS+1}
    v_sub_f32 v{t0}, v{t0}, v{t1}
    v_sub_f32 v{t2}, v{t2}, v{t3}
    v_sub_f32 v{t4}, v{t4}, v{t5}
    v_cvt_pk_bf16_f32 v{t0}, v{t0}, v{t0}
    v_cvt_pk_bf16_f32 v{vPS}, v{t2}, v{t4}
    v_lshlrev_b32 v{t0}, 16, v{t0}
    v_lshlrev_b32 v{t2}, 16, v{vPS}
    v_and_b32 v{t4}, {HI}, v{vPS}
    v_mul_f32 v{t1}, v{t0}, v{t0}
    v_mul_f32 v{t2}, v{t2}, v{t2}
    v_mul_f32 v{t4}, v{t4}, v{t4}
    v_cvt_pk_bf16_f32 v{t1}, v{t1}, v{t2}
    v_cvt_pk_bf16_f32 v{t4}, v{t4}, v{t4}
    v_lshlrev_b32 v{t2}, 16, v{t1}
    v_and_b32 v{t1}, {HI}, v{t1}
    v_lshlrev_b32 v{t4}, 16, v{t4}
    v_add_f32 v{t1}, v{t1}, v{t2}
    v_add_f32 v{t1}, v{t1}, v{t4}
    v_cvt_pk_bf16_f32 v{vPD}, v{t1}, v{t0}
    s_waitcnt lgkmcnt(0)
    v_add_u32 v{vBK}, v{vBK}, v{vRK}
    v_mul_u32_u24 v{vBK}, 20, v{vBK}
    v_add_u32 v{vBK}, {REC}, v{vBK}
    s_mov_b64 exec, s[{sEDGE}:{sEDGE+1}]
    ds_write2_b32 v{vBK}, v{vEA}, v{vEA+1} offset0:0 offset1:1
    ds_write2_b32 v{vBK}, v{vPD}, v{vDL} offset0:2 offset1:3
    ds_write_b32 v{vBK}, v{vPS} offset:16
    s_mov_b64 exec, -1
    s_cmp_ge_u32 s{sWAVE}, 8
    s_cbranch_scc1 K1_side
    """)
    vWA, vHB, vHS, vSB, vSS = 2, 3, 4, 5, 10
    sRS, sCT = 44, 45
    a(f"""
    s_lshr_b32 s{sRS}, s{sWAVE}, 2
    s_and_b32 s{sCT}, s{sWAVE}, 3
    v_bfe_u32 v{vX0}, v{vL}, 2, 2
    v_lshrrev_b32 v{vX1}, 5, v{vL}
    v_lshl_add_u32 v{vX2}, v{vX1}, 3, v{vX0}
    v_lshlrev_b32 v{vWA}, 8, v{vX2}
    v_bfe_u32 v{vX2}, v{vL}, 4, 1
    v_bfe_u32 v{vX3}, v{vL}, 1, 1
    v_lshl_add_u32 v{vX2}, v{vX2}, 1, v{vX3}
    s_lshl_b32 s{sT0}, s{sCT}, 2
    v_add_u32 v{vX2}, s{sT0}, v{vX2}
    v_lshlrev_b32 v{vX0}, 2, v{vX0}
    v_xor_b32 v{vX2}, v{vX2}, v{vX0}
    v_lshl_add_u32 v{vWA}, v{vX2}, 4, v{vWA}
    v_and_b32 v{vX2}, 1, v{vL}
    v_lshl_add_u32 v{vWA}, v{vX2}, 3, v{vWA}
    v_add_u32 v{vWA}, {WT}, v{vWA}
    s_mul_i32 s{sT0}, s{sRS}, 40
    """)
    node_addrs(a, vL, vHB, vHS, (vX0, vX1, vX2, vX3), sT0, HT, 528, ZERO, sT1=sT1)
    a(f"s_lshl_b32 s{sT2}, s{sCT}, 6")
    out_addrs(a, vL, vSB, vSS, (vX0, vX1, vX2, vX3), sT0, STG, 272, sT2, sT1=sT1)
    a("s_waitcnt lgkmcnt(0)\ns_barrier")
    stamp(a, cfg, "k1", 4)
    AB, AS, FR = 64, 80, 12
    NSET = 4

    def rd(t):
        b = FR + 12 * (t % NSET)
        a(f"ds_read_b64_tr_b16 {v(b,2)}, v{vWA} offset:{4096*t}")
        a(f"ds_read_b64_tr_b16 {v(b+2,2)}, v{vWA} offset:{4096*t+1024}")
        a(f"ds_read_b128 {v(b+4,4)}, v{vHB} offset:{32*t}")
        a(f"ds_read_b128 {v(b+8,4)}, v{vHS} offset:{32*t}")
    for t in range(3):
        rd(t)
    for t in range(16):
        left = min(15, t + 2) - t
        a(f"s_waitcnt lgkmcnt({4*left})")
        b = FR + 12 * (t % NSET)
        a(f"v_mfma_f32_32x32x16_bf16 {v(AB,16)}, {v(b,4)}, {v(b+4,4)}, {'0' if t == 0 else v(AB,16)}")
        a(f"v_mfma_f32_16x16x32_bf16 {v(AS,4)}, {v(b,4)}, {v(b+8,4)}, {'0' if t == 0 else v(AS,4)}")
        if t + 3 < 16:
            rd(t + 3)
    a(f"""
    s_mov_b32 s46, {fbits(LOG2E_NEG)}
    v_lshrrev_b32 v{vX0}, 4, v0
    v_and_b32 v{vX1}, 15, v0
    v_mul_u32_u24 v{vX2}, 272, v{vX0}
    v_lshl_add_u32 v{vX2}, v{vX1}, 4, v{vX2}
    v_lshlrev_b32 v{vX0}, 9, v{vX0}
    v_lshl_add_u32 v{vX0}, v{vX1}, 4, v{vX0}
    s_mul_i32 s{sT0}, s{sRT}, {80*512}
    s_lshl_b32 s{sT1}, s{sHALF}, 8
    s_add_u32 s{sT0}, s{sT0}, s{sT1}
    s_add_u32 s{sT0}, s{sT0}, {WS_B}
    v_add_u32 v{vX0}, s{sT0}, v{vX0}
    """)
    stamp(a, cfg, "k1", 5)
    for k in range(10):
        a(f"v_pk_mul_f32 {v(AB+2*k,2)}, {v(AB+2*k,2)}, s[46:47] op_sel_hi:[1,0]")
    for k in range(10):
        a(f"v_cvt_pk_bf16_f32 v{FR+k}, v{AB+2*k}, v{AB+2*k+1}")
    for q in range(4):
        a(f"ds_write_b64 v{vSB}, {v(FR+2*q,2)} offset:{16*q}")
    a(f"""
    ds_write_b64 v{vSS}, {v(FR+8,2)}
    v_add_u32 v{vX1}, 16384, v{vX0}
    v_add_u32 v{vX3}, 32768, v{vX0}
    s_waitcnt lgkmcnt(0)
    s_barrier
    ds_read_b128 v[24:27], v{vX2} offset:{STG}
    ds_read_b128 v[28:31], v{vX2} offset:{STG+8704}
    s_cmp_ge_u32 s{sWAVE}, 4
    s_cbranch_scc1 K1_two
    ds_read_b128 v[32:35], v{vX2} offset:{STG+2*8704}
    s_waitcnt lgkmcnt(0)
    global_store_dwordx4 v{vX3}, v[32:35], s[20:21] {stb}
    K1_two:
    s_waitcnt lgkmcnt(0)
    global_store_dwordx4 v{vX0}, v[24:27], s[20:21] {stb}
    global_store_dwordx4 v{vX1}, v[28:31], s[20:21] {stb}
    """)
    stamp(a, cfg, "k1", 6, wait=True)
    stamp_flush(a, cfg, "k1", 20)
    a("s_endpgm")
    a(f"""
    K1_side:
    s_cmp_lt_u32 s45, 8
    s_cbranch_scc1 K1_kc
    s_cmp_lt_i32 s45, 0
    s_cbranch_scc0 K1_nofrag
    v_lshl_or_b32 v{vF}, v{vF+1}, 16, v{vF}
    v_lshl_or_b32 v{vF+1}, v{vF+3}, 16, v{vF+2}
    v_lshl_or_b32 v{vF+2}, v{vF+5}, 16, v{vF+4}
    v_lshl_or_b32 v{vF+3}, v{vF+7}, 16, v{vF+6}
    s_lshl_b32 s{sT0}, s44, 10
    s_add_u32 s{sT0}, s{sT0}, {WS_WF}
    v_add_u32 v{vX0}, s{sT0}, v{vX2}
    global_store_dwordx4 v{vX0}, {v(vF,4)}, s[20:21] {st}
    s_branch K1_nofrag
    K1_kc:
    v_cmp_gt_u32 vcc, 32, v{vL}
    v_mov_b32 v{vX1}, {fbits(LOG2E_NEG)}
    v_lshlrev_b32 v{vF+4}, 16, v{vF+4}
    v_lshlrev_b32 v{vF+5}, 16, v{vF+5}
    v_cndmask_b32_e64 v{vX0}, 0, v{vX1}, vcc
    v_lshlrev_b32 v{vF+6}, 16, v{vF+6}
    v_lshlrev_b32 v{vF+7}, 16, v{vF+7}
    v_mul_f32 v{vF+4}, v{vX1}, v{vF+4}
    v_mul_f32 v{vF+5}, v{vX0}, v{vF+5}
    v_mul_f32 v{vF+6}, v{vX0}, v{vF+6}
    v_mul_f32 v{vF+7}, v{vX0}, v{vF+7}
    v_cvt_pk_bf16_f32 v{vF}, v{vF+4}, v{vF+5}
    v_cvt_pk_bf16_f32 v{vF+1}, v{vF+6}, v{vF+7}
    s_lshl_b32 s{sT0}, s45, 9
    s_add_u32 s{sT0}, s{sT0}, {WS_KC}
    v_lshl_add_u32 v{vX0}, v{vL}, 3, s{sT0}
    global_store_dwordx2 v{vX0}, {v(vF,2)}, s[20:21] {st}
    K1_nofrag:
    s_cmp_eq_u32 s{sWAVE}, 8
    s_cbranch_scc1 K1_nooff
    v_lshl_or_b32 v{o0}, v{c0}, 16, v{o0}
    v_lshl_or_b32 v{o0+1}, v{c0+1}, 16, v{o0+1}
    v_lshl_or_b32 v{o0+2}, v{c0+2}, 16, v{o0+2}
    v_lshl_or_b32 v{o0+3}, v{c0+3}, 16, v{o0+3}
    s_lshl_b32 s{sT0}, s2, 10
    s_add_u32 s{sT0}, s{sT0}, {WS_OFF}
    v_add_u32 v{vX1}, s{sT0}, v{vX2}
    global_store_dwordx4 v{vX1}, {v(o0,4)}, s[20:21] {st}
    K1_nooff:
    s_sub_u32 s{sT0}, s{sWAVE}, 8
    s_lshl_b32 s{sT0}, s{sT0}, 10
    v_add_u32 v{vX2}, s{sT0}, v{vX2}
    s_mul_i32 s{sT0}, s2, {REC_STRIDE}
    s_add_u32 s{sT0}, s{sT0}, {WS_REC}
    v_add_u32 v{vX3}, s{sT0}, v{vX2}
    v_cmp_gt_u32 vcc, {REC_STRIDE-6*2048}, v{vX2}
    s_waitcnt lgkmcnt(0)
    s_barrier
    """)
    R = 64
    for i in range(7):
        a(f"ds_read_b128 {v(R+4*i,4)}, v{vX2} offset:{REC+2048*i}")
    for i in range(6):
        if i and i % 2 == 0:
            a(f"v_add_u32 v{vX3}, 4096, v{vX3}")
        a(f"s_waitcnt lgkmcnt({6-i})")
        a(f"global_store_dwordx4 v{vX3}, {v(R+4*i,4)}, s[20:21] offset:{2048*(i&1)} {st}")
    a(f"""
    v_add_u32 v{vX3}, 4096, v{vX3}
    s_and_b64 exec, exec, vcc
    s_cbranch_execz K1_sdone
    s_waitcnt lgkmcnt(0)
    global_store_dwordx4 v{vX3}, {v(R+24,4)}, s[20:21] {st}
    K1_sdone:
    s_barrier
    K1_exit:
    s_endpgm
    """)
    return dict(vgpr=96, sgpr=100 if cfg.get('stamps') else 64, lds=K1_LDS, threads=K1_THREADS, grid=256)
```

```python
from asmlib import Asm, v, s
from common import *

CNT, ZERO = 0, 768
HT = 2048
MT = HT + 21120 + 512
OPS = MT + 21120
NBLK = 27
RING = OPS + NBLK * 3072
K2_LDS = RING + 32768
SLOW_R = (NBLK - 5) * 32 // 8
assert OPS % 256 == 0 and RING % 256 == 0 and K2_LDS <= 163840 and SLOW_R <= 128


class Alloc:
    def __init__(self, first):
        self.n = first

    def __call__(self, k=1):
        if k > 1 and self.n & 1:
            self.n += 1
        r = self.n
        self.n += k
        return r


def gen_k2(a: Asm, cfg):
    ost = cfg.get("out_store", "")
    w2s = cfg.get("w2s", [4, 4, 4, 4, 0])
    w1s = cfg.get("w1s", [4, 4, 4, 4, 0])
    assert sum(w1s) == 16 and sum(w2s) == 16
    w1c = [sum(w1s[:i]) for i in range(6)]
    w2c = [sum(w2s[:i]) for i in range(6)]
    prio = cfg.get("prio", 1)
    ZF0 = cfg.get("zf0", 5)
    sWS, sH, sG4 = 24, 28, 32
    sB, sW, sT0, sT1 = 36, 37, 38, 39
    sT2, sM, sQ, sG, sP = 40, 42, 43, 44, 45
    sJ0, sR, sLast, sTw, sTmax, sFirst, sAdone, sOver, sSp, sRing, sWO, sCO = range(46, 58)
    sV0, sV1, sC4, sL = 58, 60, 62, 64
    sWX = 4
    sWC = 28
    al = Alloc(1)
    vL, vA, vSr, vR0, vR1, vMW, vHB, vHS, vOB, vOS, vW16, vCB, vCS = (al() for _ in range(13))
    vVal, vPre, vInc, vLst = (al() for _ in range(4))
    PP = [al() for _ in range(4)]
    GI = [[al(2), al(2)], [al(2), al(2)]]
    P = [al(16), al(16)]
    T = al(16)
    X = al(16)
    M, ACC, BF, FA, S, FB = al(8), al(16), al(8), al(4), al(8), al(4)
    AP, ILO, IHI, WX, CB, CS, WB = al(8), al(4), al(4), al(8), al(16), al(4), al(64)
    assert P[0] + 16 == P[1] and T + 16 == X and CB + 16 == CS and BF + 8 == FA and al.n <= 256, al.n
    HR, vPOS = BF, S
    WC, HCB, HCS = X + 4, X + 8, X + 12
    x0, x1, x2, x3, x4, x5, x6, x7 = range(X, X + 8)
    vOne = X + 15

    def zero_fill(part=None):
        if part in (None, 0):
            a(f"""
            v_mov_b64 {v(T,2)}, 0
            v_mov_b64 {v(T+2,2)}, 0
            v_lshlrev_b32 v{T+4}, 4, v0
            v_add_u32 v{T+5}, {OPS}, v{T+4}
            v_add_u32 v{T+6}, {OPS+65536}, v{T+4}
            v_lshlrev_b32 v{T+7}, 3, v0
            ds_write_b64 v{T+7}, {v(T,2)} offset:{MT}
            """)
            lab = a.uid("K2_nolow")
            a(f"s_cmp_ge_u32 s{sW}, 2\ns_cbranch_scc1 {lab}\nds_write_b128 v{T+4}, {v(T,4)}\n{lab}:")
        rr = range(11) if part is None else (range(ZF0) if part == 0 else range(ZF0, 11))
        for r in rr:
            a(f"ds_write_b128 v{T+5 if r < 8 else T+6}, {v(T,4)} offset:{8192*(r&7)}")

    def wload(mtx, lo, hi):
        for t in range(lo, hi):
            if t == lo or t % 4 == 0:
                a(f"s_add_u32 s{sSp}, s{sWO}, {mtx*131072 + (t//4)*4096}")
            a(f"buffer_load_dwordx4 {v(WB+4*t,4)}, v{vW16}, s[{sWS}:{sWS+3}], s{sSp} offen offset:{1024*(t%4)}")

    def w1load(i):
        if w1s[i]:
            lab = a.uid("K2_now1")
            a(f"s_cmp_lg_u32 s{sAdone}, 0\ns_cbranch_scc1 {lab}")
            wload(0, w1c[i], w1c[i + 1])
            a(f"{lab}:")

    def gemm40(accB, accS, w_is_a, fr, init0, waits=None):
        def rd(t):
            b = fr + 8 * (t % 4)
            a(f"ds_read_b128 {v(b,4)}, v{vHB} offset:{32*t}")
            a(f"ds_read_b128 {v(b+4,4)}, v{vHS} offset:{32*t}")
        for t in range(3):
            rd(t)
        for t in range(16):
            left = min(15, t + 2) - t
            b = fr + 8 * (t % 4)
            w = v(WB + 4 * t, 4)
            if waits and t in waits:
                a(f"s_waitcnt vmcnt({waits[t]}) lgkmcnt({2*left})")
            else:
                a(f"s_waitcnt lgkmcnt({2*left})")
            cb = "0" if init0 and t == 0 else v(accB, 16)
            cs = "0" if init0 and t == 0 else v(accS, 4)
            if w_is_a:
                a(f"v_mfma_f32_32x32x16_bf16 {v(accB,16)}, {w}, {v(b,4)}, {cb}")
                a(f"v_mfma_f32_16x16x32_bf16 {v(accS,4)}, {w}, {v(b+4,4)}, {cs}")
            else:
                a(f"v_mfma_f32_32x32x16_bf16 {v(accB,16)}, {v(b,4)}, {w}, {cb}")
                a(f"v_mfma_f32_16x16x32_bf16 {v(accS,4)}, {v(b+4,4)}, {w}, {cs}")
            if t + 3 < 16:
                rd(t + 3)

    def src_read(slot, blk):
        return [f"ds_read_u16 v{GI[slot][0]}, v{vSr} offset:{3072*blk}",
                f"ds_read_u16 v{GI[slot][1]}, v{vSr} offset:{3072*blk+256}"]

    def dma(slot):
        return [f"buffer_load_dwordx4 {v(GI[slot][i],2)}, s[{sG4}:{sG4+3}], 0 idxen offen offset:{2048*slot+1024*i} lds"
                for i in range(2)]

    def setprio(old, young):
        if prio:
            l1, l2 = a.uid("K2_py"), a.uid("K2_pd")
            if young is None:
                a(f"s_cmp_ge_u32 s{sW}, 4\ns_cbranch_scc1 {l1}\ns_setprio {old}\n{l1}:")
            else:
                a(f"s_setprio {old}\ns_cmp_lt_u32 s{sW}, 4\ns_cbranch_scc1 {l1}\ns_setprio {young}\n{l1}:")

    a.label(K2_NAME)
    a(f"""
    s_and_b32 s{sT0}, s2, 7
    s_lshr_b32 s{sT1}, s2, 3
    s_lshl_b32 s{sT0}, s{sT0}, 5
    s_add_u32 s{sB}, s{sT0}, s{sT1}
    s_cmp_ge_u32 s2, 256
    s_cbranch_scc1 K2_exit
    s_cmp_ge_u32 s{sB}, 250
    s_cbranch_scc1 K2_exit
    s_load_dwordx2 s[{sWS}:{sWS+1}], s[0:1], 80
    s_load_dwordx2 s[{sH}:{sH+1}], s[0:1], 0
    s_load_dwordx2 s[22:23], s[0:1], 48
    s_load_dwordx2 s[20:21], s[0:1], 64
    s_load_dwordx2 s[66:67], s[0:1], 8
    """)
    stamp(a, cfg, "k2", 0)
    a(f"""
    v_lshrrev_b32 v{x0}, 6, v0
    v_and_b32 v{vL}, 63, v0
    v_readfirstlane_b32 s{sW}, v{x0}
    s_mov_b32 s{sWS+2}, {WS_END}
    s_mov_b32 s{sWS+3}, 0x20000
    s_mov_b32 s{sH+2}, 5120000
    s_mov_b32 s{sH+3}, 0x20000
    s_lshl_b32 s{sT0}, s{sW}, 15
    s_lshl_b32 s{sT1}, s{sB}, 2
    s_add_u32 s{sT0}, s{sT0}, s{sT1}
    s_add_u32 s{sT0}, s{sT0}, {WS_OFF}
    v_lshl_add_u32 v{x4}, v{vL}, 10, s{sT0}
    v_mov_b32 v{vInc}, 0
    """)
    zero_fill(0)
    a(f"""
    s_mul_i32 s{sT1}, s{sB}, 20480
    s_lshl_b32 s{sT2}, s{sW}, 6
    s_waitcnt lgkmcnt(0)
    s_mov_b32 exec_hi, 0
    buffer_load_dword v{vInc}, v{x4}, s[{sWS}:{sWS+3}], 0 offen
    s_mov_b32 exec_hi, -1
    s_add_u32 s22, s22, s{sT2}
    s_addc_u32 s23, s23, 0
    s_load_dwordx16 s[{sWX}:{sWX+15}], s[22:23], 0
    """)
    if cfg.get("bar0", 1):
        a("s_barrier")
    a(f"""
    s_add_u32 s{sT0}, s{sT1}, 8192
    s_add_u32 s{sT2}, s{sT1}, 16384
    s_mov_b32 s{sSp}, {WS_KC}
    buffer_load_dwordx2 {v(FB+2,2)}, v{T+7}, s[{sWS}:{sWS+3}], s{sSp} offen
    buffer_load_dwordx4 {v(P[0],4)}, v{T+4}, s[{sH}:{sH+3}], s{sT1} offen
    buffer_load_dwordx4 {v(P[0]+4,4)}, v{T+4}, s[{sH}:{sH+3}], s{sT0} offen
    buffer_load_dwordx4 {v(P[0]+8,4)}, v{T+4}, s[{sH}:{sH+3}], s{sT2} offen
    """)
    zero_fill(1)
    a(f"""
    s_cmp_lg_u32 s{sW}, 2
    s_cbranch_scc1 K2_nopad
    v_min_u32 v{x0}, 39, v{vL}
    v_sub_u32 v{x1}, v{vL}, v{x0}
    v_mul_u32_u24 v{x0}, 528, v{x0}
    v_lshl_add_u32 v{x0}, v{x1}, 4, v{x0}
    ds_write_b128 v{x0}, {v(T,4)} offset:{HT+512}
    K2_nopad:
    s_mov_b32 s{sJ0}, 0
    s_mov_b32 s{sR}, 128
    s_mov_b32 s{sLast}, 1
    s_mov_b32 s{sFirst}, 1
    s_mov_b32 s{sAdone}, 0
    s_lshl_b32 s{sT0}, s{sW}, 5
    v_add_u32 v{x4}, s{sT0}, v{vL}
    v_mul_u32_u24 v{x4}, {REC_STRIDE}, v{x4}
    v_add_u32 v{x7}, {WS_REC}, v{x4}
    s_lshl_b32 s{sT0}, s{sW}, 9
    s_add_u32 s{sT0}, s{sT0}, {MT}
    v_mov_b32 v{vLst}, s{sT0}
    v_lshlrev_b32 v{vW16}, 4, v{vL}
    s_lshl_b32 s{sWO}, s{sW}, 14
    s_add_u32 s{sWO}, s{sWO}, {WS_WF}
    """)

    def lane_consts():
        a(f"""
        s_mov_b32 s{sC4}, 0x11111111
        s_mov_b32 s{sC4+1}, 0x11111111
        s_mov_b32 s{sL}, {fbits(LOG2E_NEG)}
        s_lshl_b32 s{sRing}, s{sW}, 12
        s_add_u32 s{sRing}, s{sRing}, {RING}
        s_mov_b32 m0, s{sRing}
        s_add_u32 s{sG4}, s{sWS}, {WS_B-3072}
        s_addc_u32 s{sG4+1}, s{sWS+1}, 0
        s_or_b32 s{sG4+1}, s{sG4+1}, 0x2000000
        s_mov_b32 s{sG4+2}, 10000
        s_mov_b32 s{sG4+3}, 0x20000
        v_lshrrev_b32 v{x0}, 4, v{vL}
        v_xor_b32 v{x0}, v{x0}, v{vL}
        v_and_b32 v{x0}, 3, v{x0}
        s_lshl_b32 s{sT2}, s{sW}, 6
        v_lshl_add_u32 v{GI[1][1]+1}, v{x0}, 4, s{sT2}
        v_add_u32 v{GI[1][0]+1}, 1024, v{GI[1][1]+1}
        v_add_u32 v{GI[0][1]+1}, 2048, v{GI[1][1]+1}
        v_add_u32 v{GI[0][0]+1}, 3072, v{GI[1][1]+1}
        v_and_b32 v{x0}, 31, v{vL}
        v_lshrrev_b32 v{x1}, 5, v{vL}
        v_bfe_u32 v{x2}, v{vL}, 2, 2
        v_xor_b32 v{x2}, v{x2}, v{x1}
        v_lshlrev_b32 v{x2}, 4, v{x2}
        v_lshl_add_u32 v{x2}, v{x0}, 6, v{x2}
        v_add_u32 v{vR0}, s{sRing}, v{x2}
        v_xor_b32 v{x2}, 32, v{x2}
        v_add_u32 v{vR1}, s{sRing}, v{x2}
        v_lshrrev_b32 v{x2}, 2, v{x0}
        v_mul_u32_u24 v{x2}, 528, v{x2}
        v_lshl_add_u32 v{x2}, v{x1}, 3, v{x2}
        s_add_u32 s{sT0}, s{sT2}, {MT}
        v_add_u32 v{vMW}, s{sT0}, v{x2}
        v_lshlrev_b32 v{x1}, 3, v{x1}
        v_sub_u32 v{x0}, v{x0}, v{x1}
        v_and_b32 v{x1}, 1, v{x0}
        v_lshlrev_b32 v{x1}, 4, v{x1}
        v_mov_b32 v{x2}, 0x3f80
        v_lshlrev_b32 v{x1}, v{x1}, v{x2}
        v_ashrrev_i32 v{x0}, 1, v{x0}
        """)
        for k in range(4):
            a(f"v_cmp_eq_u32 vcc, {k}, v{x0}\nv_cmp_eq_u32 s[68:69], {8+k}, v{x0}\ns_nop 0")
            a(f"v_cndmask_b32_e64 v{ILO+k}, 0, v{x1}, vcc\nv_cndmask_b32_e64 v{IHI+k}, 0, v{x1}, s[68:69]")
        node_addrs(a, vL, vHB, vHS, (x0, x1, x2, x3), None, HT, 528, ZERO, sT1)
        out_addrs(a, vL, vOB, vOS, (x0, x1, x2, x3), None, HT, 528, sT2, sT1)
    if cfg.get("consts_early", 0):
        lane_consts()
    a("s_waitcnt vmcnt(4)")
    stamp(a, cfg, "k2", 1)
    a(f"""
    v_and_b32 v{x0}, 0xffff, v{vInc}
    v_lshrrev_b32 v{vInc}, 16, v{vInc}
    v_mov_b32 v{vPre}, v{vInc}
    """)
    scan(a, vInc, "v_add_u32", 32)
    a(f"""
    v_sub_u32 v{vPre}, v{vInc}, v{vPre}
    v_readlane_b32 s{sTw}, v{vInc}, 31
    v_sub_u32 v{x0}, v{x0}, v{vPre}
    v_mad_i32_i24 v{vVal}, v{x0}, 20, v{x7}
    """)
    RA, RB = P[1], P[1] + 8
    a(f"""
    K2_expand:
    s_add_u32 s{sT0}, s{sJ0}, s{sR}
    v_cmp_lt_u32 vcc, v{vPre}, v{vInc}
    v_cmp_lt_u32 s[{sV0}:{sV0+1}], s{sJ0}, v{vInc}
    v_cmp_gt_u32 s[{sV1}:{sV1+1}], s{sT0}, v{vPre}
    v_subrev_u32 v{x0}, s{sJ0}, v{vPre}
    v_max_i32 v{x0}, 0, v{x0}
    v_lshl_add_u32 v{x0}, v{x0}, 2, v{vLst}
    v_lshl_add_u32 v{x1}, v{vL}, 2, v{vLst}
    s_and_b64 vcc, vcc, s[{sV0}:{sV0+1}]
    s_and_b64 exec, vcc, s[{sV1}:{sV1+1}]
    ds_write_b32 v{x0}, v{vVal}
    s_mov_b64 exec, -1
    ds_read2st64_b32 {v(x2,2)}, v{x1} offset0:0 offset1:1
    s_sub_i32 s{sT1}, s{sTw}, s{sJ0}
    s_max_i32 s{sT1}, s{sT1}, 0
    s_min_u32 s{sT1}, s{sT1}, s{sR}
    v_add_u32 v{x4}, 64, v{vL}
    v_cmp_gt_u32 s[{sV0}:{sV0+1}], s{sT1}, v{vL}
    v_cmp_gt_u32 s[{sV1}:{sV1+1}], s{sT1}, v{x4}
    v_add_u32 v{x4}, s{sJ0}, v{vL}
    v_mul_u32_u24 v{x4}, 20, v{x4}
    v_mov_b32 v{x5}, 0x7fffff00
    s_waitcnt lgkmcnt(0)
    """)
    scan2(a, x2, x3, "v_max_u32")
    a(f"""
    v_readlane_b32 s{sT0}, v{x2}, 63
    v_add_u32 v{x2}, v{x2}, v{x4}
    v_add_u32 v{x4}, {64*20}, v{x4}
    v_max_u32 v{x3}, s{sT0}, v{x3}
    v_add_u32 v{x3}, v{x3}, v{x4}
    v_cndmask_b32_e64 v{x2}, v{x5}, v{x2}, s[{sV0}:{sV0+1}]
    v_cndmask_b32_e64 v{x3}, v{x5}, v{x3}, s[{sV1}:{sV1+1}]
    buffer_load_dwordx4 {v(RA,4)}, v{x2}, s[{sWS}:{sWS+3}], 0 offen
    buffer_load_dwordx4 {v(RB,4)}, v{x3}, s[{sWS}:{sWS+3}], 0 offen
    buffer_load_dword v{RA+4}, v{x2}, s[{sWS}:{sWS+3}], 0 offen offset:16
    buffer_load_dword v{RB+4}, v{x3}, s[{sWS}:{sWS+3}], 0 offen offset:16
    s_cmp_eq_u32 s{sFirst}, 0
    s_cbranch_scc1 K2_again1
    """)
    stamp(a, cfg, "k2", 2)
    a(f"""
    v_lshrrev_b32 v{x0}, 5, v0
    v_and_b32 v{x1}, 31, v0
    v_mul_u32_u24 v{x0}, 528, v{x0}
    v_lshl_add_u32 v{x0}, v{x1}, 4, v{x0}
    s_waitcnt vmcnt(4)
    ds_write_b128 v{x0}, {v(P[0],4)} offset:{HT}
    ds_write_b128 v{x0}, {v(P[0]+4,4)} offset:{HT+8448}
    s_cmp_ge_u32 s{sW}, 4
    s_cbranch_scc1 K2_h2
    ds_write_b128 v{x0}, {v(P[0]+8,4)} offset:{HT+2*8448}
    K2_h2:
    """)
    if not cfg.get("consts_early", 0):
        lane_consts()
    for k in range(8):
        a(f"v_mov_b32 v{WX+k}, s{sWX + 4*(k>>1) + (k&1)}")
    a("s_mov_b32 exec_lo, 0")
    for k in range(8):
        a(f"v_mov_b32 v{WX+k}, s{sWX + 4*(k>>1) + 2 + (k&1)}")
    a(f"""
    s_mov_b32 exec_lo, -1
    s_add_u32 s{sWC}, s{sWS}, s{sWO}
    s_addc_u32 s{sWC+1}, s{sWS+1}, 0
    s_add_u32 s{sWC}, s{sWC}, 131072
    s_addc_u32 s{sWC+1}, s{sWC+1}, 0
    K2_back1:
    v_mov_b32 v{vOne}, 0x3f80
    v_mov_b32 v{x6}, 1
    v_mov_b32 v{x7}, s{sTw}
    v_mov_b32 v{x5}, {CNT+24}
    v_min_u32 v{x4}, 7, v{vL}
    v_lshlrev_b32 v{x4}, 2, v{x4}
    s_waitcnt lgkmcnt(0)
    s_barrier
    """)
    w1load(0)
    a(f"""
    s_mov_b64 exec, 1
    ds_max_u32 v{x5}, v{x7}
    s_mov_b64 exec, -1
    s_waitcnt vmcnt({2+w1s[0]})
    """)
    stamp(a, cfg, "k2", 3)
    for R, sv in ((RA, sV0), (RB, sV1)):
        a(f"""
        v_lshrrev_b32 v{R+5}, 1, v{R+3}
        v_and_b32 v{R+5}, 0x1c, v{R+5}
        s_mov_b64 exec, s[{sv}:{sv+1}]
        ds_add_rtn_u32 v{R+6}, v{R+5}, v{x6} offset:{CNT}
        s_mov_b64 exec, -1
        """)
    a(f"""
    v_lshlrev_b32 v{x6}, 1, v{vL}
    v_add_u32 v{x6}, 8, v{x6}
    v_cmp_gt_u32 vcc, 5, v{vL}
    s_waitcnt lgkmcnt(0)
    s_barrier
    ds_read_b32 v{x0}, v{x4} offset:{CNT}
    """)
    w1load(1)
    for R in (RA, RB):
        a(f"""
        v_lshrrev_b32 v{x1}, 5, v{R+6}
        v_mul_u32_u24 v{x1}, 3072, v{x1}
        v_and_b32 v{x2}, 7, v{R+3}
        v_lshl_add_u32 v{R+7}, v{x2}, 6, v{x1}
        v_and_b32 v{x2}, 16, v{R+6}
        v_lshl_add_u32 v{R+7}, v{x2}, 6, v{R+7}
        v_and_b32 v{x2}, 4, v{R+6}
        v_lshl_add_u32 v{R+7}, v{x2}, 7, v{R+7}
        v_and_b32 v{x2}, 3, v{R+6}
        v_lshl_add_u32 v{R+7}, v{x2}, 1, v{R+7}
        v_and_or_b32 v{R+7}, v{R+6}, 8, v{R+7}
        v_and_b32 v{x2}, 31, v{R+6}
        v_lshl_add_u32 v{R+6}, v{x2}, 4, v{x1}
        """)
    a(f"""
    s_waitcnt lgkmcnt(0)
    v_readlane_b32 s{sT1}, v{x0}, 6
    v_max_u32 v{x1}, 1, v{x0}
    v_add_u32 v{x2}, -1, v{x1}
    v_lshrrev_b32 v{x1}, 5, v{x2}
    v_add_u32 v{x1}, 1, v{x1}
    v_bfe_u32 v{x2}, v{x2}, 3, 2
    v_lshl_or_b32 v{x2}, v{x2}, v{x6}, v{x1}
    v_cndmask_b32_e64 v{x2}, 0, v{x2}, vcc
    """)
    for sh in (1, 2, 4):
        a(f"s_nop 1\nv_add_u32_dpp v{x2}, v{x2}, v{x2} row_shr:{sh} row_mask:0xf bank_mask:0xf bound_ctrl:1")
    a(f"""
    s_nop 0
    v_readlane_b32 s{sQ}, v{x2}, 4
    v_and_b32 v{x2}, 0xff, v{x2}
    v_sub_u32 v{x3}, v{x2}, v{x1}
    v_mul_u32_u24 v{x3}, 3072, v{x3}
    v_add_u32 v{x3}, {OPS}, v{x3}
    ds_bpermute_b32 v{RA+5}, v{RA+5}, v{x3}
    ds_bpermute_b32 v{RB+5}, v{RB+5}, v{x3}
    v_sub_u32 v{x2}, 32, v{x2}
    v_lshlrev_b32 v{x2}, v{x2}, 1
    v_cndmask_b32_e64 v{x2}, 0, v{x2}, vcc
    s_and_b32 s{sT0}, s{sQ}, 0xff
    s_lshr_b32 s{sQ}, s{sQ}, 8
    """)
    for sh in (1, 2, 4):
        a(f"v_add_u32_dpp v{x2}, v{x2}, v{x2} row_shr:{sh} row_mask:0xf bank_mask:0xf bound_ctrl:1\ns_nop 1")
    a(f"""
    v_readlane_b32 s{sM}, v{x2}, 4
    s_cmp_gt_u32 s{sT0}, {NBLK}
    s_cselect_b32 s{sOver}, 1, 0
    s_cmp_eq_u32 s{sFirst}, 0
    s_cbranch_scc1 K2_notfirst
    s_mov_b32 s{sTmax}, s{sT1}
    s_cmp_gt_u32 s{sT1}, 128
    s_cselect_b32 s{sOver}, 1, s{sOver}
    K2_notfirst:
    s_mov_b32 s{sFirst}, 0
    """)
    w1load(2)
    a(f"""
    s_cmp_lg_u32 s{sOver}, 0
    s_cbranch_scc1 K2_over1
    s_waitcnt vmcnt({w1c[3]}) lgkmcnt(0)
    """)
    for R, sv in ((RA, sV0), (RB, sV1)):
        a(f"""
        v_bfe_u32 v{x0}, v{R+3}, 2, 1
        v_and_b32 v{x1}, 3, v{R+3}
        v_add_u32 v{R+6}, v{R+6}, v{R+5}
        v_add_u32 v{R+7}, v{R+7}, v{R+5}
        v_lshl_add_u32 v{x0}, v{x0}, 9, v{R+6}
        v_lshl_add_u32 v{x0}, v{x1}, 1, v{x0}
        s_mov_b64 exec, s[{sv}:{sv+1}]
        ds_write_b64 v{R+6}, {v(R+2,2)} offset:520
        ds_write_b64 v{R+6}, {v(R,2)} offset:8
        ds_write_b16 v{x0}, v{vOne}
        ds_write_b16 v{R+7}, v{vOne} offset:1024
        ds_write_b16_d16_hi v{R+7}, v{R+2} offset:1040
        ds_write_b16 v{R+7}, v{R+4} offset:1056
        ds_write_b16_d16_hi v{R+7}, v{R+4} offset:1072
        s_mov_b64 exec, -1
        """)
    a(f"""
    v_add_u32 v{vA}, {OPS}, v{vW16}
    v_lshrrev_b32 v{x0}, 2, v{vL}
    v_lshlrev_b32 v{x0}, 4, v{x0}
    v_add_u32 v{vSr}, {OPS+512+14}, v{x0}
    """)
    w1load(3)
    a("s_waitcnt lgkmcnt(0)\ns_barrier")
    stamp(a, cfg, "k2", 4)
    if cfg.get("x_bench"):
        a(f"s_mov_b32 s{sM}, {hex(0x1f << (32-27))}\ns_mov_b32 s{sQ}, 0x3ff")
    a("\n".join(src_read(0, 0) + src_read(1, 1)))
    a("s_waitcnt lgkmcnt(2)")
    a("\n".join(dma(0)))
    a("s_waitcnt lgkmcnt(0)")
    a("\n".join(dma(1)))
    a(f"""
    K2_back2:
    s_cmp_lg_u32 s{sAdone}, 0
    s_cbranch_scc1 K2_adone
    """)
    wload(0, w1c[4], 16)
    stamp(a, cfg, "k2", 5)
    waits = {t: (19 - t if t < w1c[4] else 15 - t) for t in range(16)}
    gemm40(P[0], ACC, False, T, True, waits=waits)
    a(f"s_mov_b32 s{sAdone}, 1")
    for k in range(10):
        a(f"v_mov_b64 {v(CB+2*k,2)}, 0")
    for k in range(8):
        a(f"v_pk_mul_f32 {v(P[0]+2*k,2)}, {v(P[0]+2*k,2)}, s[{sL}:{sL+1}] op_sel_hi:[1,0]")
    for k in range(2):
        a(f"v_pk_mul_f32 {v(ACC+2*k,2)}, {v(ACC+2*k,2)}, s[{sL}:{sL+1}] op_sel_hi:[1,0]")
    for k in range(8):
        a(f"v_cvt_pk_bf16_f32 v{FB+k if k < 2 else AP+k-2}, v{P[0]+2*k}, v{P[0]+2*k+1}")
    for k in range(2):
        a(f"v_cvt_pk_bf16_f32 v{AP+6+k}, v{ACC+2*k}, v{ACC+2*k+1}")
    a(f"""
    K2_adone:
    s_cmp_lg_u32 s{sOver}, 0
    s_cbranch_scc1 K2_slowstart
    """)
    for k in range(4):
        a(f"v_mov_b64 {v(M+2*k,2)}, 0")
    for k in range(8):
        a(f"v_mov_b64 {v(ACC+2*k,2)}, 0")
    a(f"""
    s_mov_b32 s{sG}, 0
    s_mov_b32 s{sP}, 0
    s_mov_b32 s{sCO}, 0
    s_lshl_b32 s{sWC+2}, s{sLast}, 14
    v_mov_b32 v{vCB}, v{vHB}
    v_mov_b32 v{vCS}, v{vHS}
    s_cmp_lg_u32 s{sJ0}, 0
    s_cbranch_scc1 K2_reload0
    K2_back3:
    """)
    stamp(a, cfg, "k2", 6)

    def frag_reads(slot):
        return [f"ds_read_b128 {v(BF,4)}, v{vR0} offset:{2048*slot}",
                f"ds_read_b128 {v(BF+4,4)}, v{vR1} offset:{2048*slot}"]

    def pre_mfma(q):
        Q = v(P[q], 16)
        return [f"v_mfma_f32_32x32x16_bf16 {Q}, {v(FA,4)}, {v(FB,4)}, 0",
                f"v_mfma_f32_32x32x16_bf16 {Q}, {v(BF,4)}, {v(ILO,4)}, {Q}",
                f"v_mfma_f32_32x32x16_bf16 {Q}, {v(BF+4,4)}, {v(IHI,4)}, {Q}"]

    agg = [f"v_mfma_f32_32x32x16_bf16 {v(ACC,16)}, {v(M,4)}, {v(S,4)}, {v(ACC,16)}",
           f"v_mfma_f32_32x32x16_bf16 {v(ACC,16)}, {v(M+4,4)}, {v(S+4,4)}, {v(ACC,16)}"]
    cm = [f"v_mfma_f32_32x32x16_bf16 {v(CB,16)}, {v(WC,4)}, {v(HCB,4)}, {v(CB,16)}",
          f"v_mfma_f32_16x16x32_bf16 {v(CS,4)}, {v(WC,4)}, {v(HCS,4)}, {v(CS,4)}"]

    def c_load(k):
        return [f"buffer_load_dwordx4 {v(WC,4)}, v{vW16}, s[{sWC}:{sWC+3}], s{sCO} offen offset:{1024*k}"]

    def c_read(k):
        return [f"ds_read_b128 {v(HCB,4)}, v{vCB} offset:{32*k}", f"ds_read_b128 {v(HCS,4)}, v{vCS} offset:{32*k}"]

    a("s_waitcnt vmcnt(2)")
    a("\n".join(frag_reads(0) + src_read(0, 2) + [f"ds_read_b128 {v(FA,4)}, v{vA}"] + c_read(0) + c_load(0)
                + ["s_waitcnt lgkmcnt(0)"] + dma(0) + pre_mfma(0)))
    a(f"s_cmp_eq_u32 s{sLast}, 0\ns_cbranch_scc1 K2_nextw")
    wload(2, 0, w2c[1])
    if prio:
        a(f"s_setprio 1")
    a(f"s_waitcnt vmcnt({2 + w2s[0]})")
    stamp(a, cfg, "k2", 7)
    a("s_branch K2_next")

    def body(p, nq, last):
        n = 4 * nq
        Pp = P[p]
        E = [f"v_exp_f32 v{T+i}, v{Pp+i}" for i in range(n)]
        A = [f"v_pk_add_f32 {v(T+i,2)}, {v(T+i,2)}, 1.0 op_sel_hi:[1,0]" for i in range(0, n, 2)]
        Rr = [f"v_rcp_f32 v{T+i}, v{T+i}" for i in range(n)]
        U = [f"v_pk_mul_f32 {v(T+i,2)}, {v(T+i,2)}, {v(Pp+i,2)}" for i in range(0, n, 2)]
        C = [f"v_cvt_pk_bf16_f32 v{M+i//2}, v{T+i}, v{T+i+1}" for i in range(0, n, 2)]
        fa = f"ds_read_b128 {v(FA,4)}, v{vA} offset:{3072*(p+1)}"
        sread = [f"ds_read_b128 {v(S,4)}, v{vA} offset:{3072*p+1024}", f"ds_read_b128 {v(S+4,4)}, v{vA} offset:{3072*p+2048}"]
        if nq <= 2:
            sread = sread[:1]
        head = frag_reads(1 - p) + src_read(1 - p, p + 3)
        dm = c_load(p + 1) + [f"s_waitcnt lgkmcnt({1+len(sread)})"] + dma(1 - p) + c_read(p + 1)
        k0, k1, k2 = (3, 6, 10) if nq >= 3 else ((2, 4, 6) if nq == 2 else (1, 2, 4))
        seq = head + E[:k0] + [cm[0], fa] + sread + E[k0:k1] + [cm[1]] + E[k1:k2] + dm + E[k2:] + A
        if last:
            seq += [f"v_mov_b64 {v(x0,2)}, {v(FB,2)}", f"v_mov_b64 {v(FB,2)}, {v(AP,2)}"]
            seq += [f"v_mov_b64 {v(AP+2*k,2)}, {v(AP+2*k+2,2)}" for k in range(3)]
            seq += [f"v_mov_b64 {v(AP+6,2)}, {v(x0,2)}"]
        pm = pre_mfma(1 - p)
        seq += ["s_waitcnt lgkmcnt(0)"]
        if nq == 1:
            seq += [pm[0]] + Rr[:2] + [pm[1]] + Rr[2:4] + [pm[2]]
        else:
            seq += [pm[0]] + Rr[:3] + [pm[1]] + Rr[3:6] + [pm[2]] + Rr[6:]
        adv = []
        if p == 1:
            adv = [f"v_add_u32 v{vA}, 6144, v{vA}", f"v_add_u32 v{vSr}, 6144, v{vSr}"]
            seq += [f"v_add_u32 v{vCB}, 64, v{vCB}", f"v_add_u32 v{vCS}, 64, v{vCS}", f"s_add_u32 s{sCO}, s{sCO}, 2048"]
        if nq == 4:
            seq += U[:4] + C[:4] + U[4:] + [agg[0]] + C[4:]
            seq += (adv or ["s_nop 0"])
            if not last:
                seq += [f"s_add_u32 s{sM}, s{sM}, s{sM}"]
            elif p == 0:
                seq += ["s_nop 0"]
            seq += [agg[1]]
        elif nq == 3:
            seq += U + C + [agg[0]] + (adv or ["s_nop 1"]) + [agg[1]]
        else:
            seq += U + C + (adv or ["s_nop 1"]) + [agg[0]]
        a("\n".join(seq))

    a(".p2align 3")
    a("K2_g0w:\ns_waitcnt vmcnt(2)\nK2_g0:")
    body(0, 4, False)
    a("s_cbranch_scc1 K2_l1w\nK2_g1w:\ns_waitcnt vmcnt(2)\nK2_g1:")
    body(1, 4, False)
    a("s_cbranch_scc0 K2_g0w")
    for p in (0, 1):
        a(f"K2_l{p}w:\ns_waitcnt vmcnt(2)\nK2_l{p}:")
        if prio == 1:
            setprio(0, None)
        a(f"""
        s_mov_b32 s{sP}, {1-p}
        s_bitcmp0_b32 s{sQ}, 1
        s_cbranch_scc1 K2_l{p}_lo
        s_bitcmp0_b32 s{sQ}, 0
        s_cbranch_scc1 K2_l{p}_3
        """)
        body(p, 4, True)
        a(f"s_branch K2_flush\nK2_l{p}_3:")
        body(p, 3, True)
        a(f"s_branch K2_flush\nK2_l{p}_lo:\ns_bitcmp0_b32 s{sQ}, 0\ns_cbranch_scc1 K2_l{p}_1")
        body(p, 2, True)
        a(f"s_branch K2_flush\nK2_l{p}_1:")
        body(p, 1, True)
        if p == 0:
            a("s_branch K2_flush")
    a("K2_flush:")
    if cfg.get("stamps"):
        a(f"s_cmp_lg_u32 s{sG}, {cfg.get('stamp_g', 0)}\ns_cbranch_scc1 K2_nost")
        stamp(a, cfg, "k2", 13)
        a("K2_nost:")
    a(f"""
    s_lshr_b32 s{sQ}, s{sQ}, 2
    s_cmp_eq_u32 s{sLast}, 0
    s_cbranch_scc1 K2_spill
    s_nop 8
    """)
    for k in range(8):
        a(f"v_cvt_pk_bf16_f32 v{T+k}, v{ACC+2*k}, v{ACC+2*k+1}")
    a(f"s_mov_b64 exec, s[{sC4}:{sC4+1}]")
    for q in range(4):
        a(f"ds_write_b64 v{vMW}, {v(T+2*q,2)} offset:{16*q}")
    a("s_mov_b64 exec, -1")
    for k in range(8):
        a(f"v_dot2_f32_bf16 v{x0}, v{T+k}, v{WX+k}, {'0' if k == 0 else v(x0)}")
    a(f"v_add_u32 v{vMW}, {8*528}, v{vMW}")
    for k in range(8):
        a(f"v_mov_b64 {v(ACC+2*k,2)}, 0")
    a(f"""
    s_cmp_lg_u32 s{sJ0}, 0
    s_cbranch_scc1 K2_reload
    K2_flushb:
    s_add_u32 s{sG}, s{sG}, 1
    """)
    for g in range(4):
        a(f"s_cmp_eq_u32 s{sG}, {g+1}\ns_cbranch_scc1 K2_x{g}")
    stamp(a, cfg, "k2", 8)
    a(f"""
    s_setprio 0
    s_lshl_b32 s{sT0}, s{sP}, 10
    s_add_u32 s{sCO}, s{sCO}, s{sT0}
    s_cmp_lt_u32 s{sCO}, 16384
    s_cbranch_scc1 K2_crest
    K2_cdone:
    """)
    for q in range(4):
        a(f"ds_read_b64 {v(HR+2*q,2)}, v{vOB} offset:{16*q}")
    a(f"""
    ds_read_b64 {v(HR+8,2)}, v{vOS}
    s_mul_i32 s{sT0}, s{sB}, 240
    v_mov_b32 v{x3}, v{x0}
    v_min_u32 v{x0}, 119, v0
    v_lshl_add_u32 v{x1}, v{x0}, 1, s{sT0}
    global_load_ushort v{vPOS}, v{x1}, s[66:67]
    v_cmp_ne_u32 vcc, {ZERO}, v{vHS}
    v_add_u32 v{vHB}, {MT-HT}, v{vHB}
    v_add_u32 v{x2}, {MT-HT}, v{vHS}
    v_cndmask_b32_e64 v{vHS}, v{vHS}, v{x2}, vcc
    v_lshl_add_u32 v{x2}, v{vL}, 2, s{sRing}
    """)
    for k in range(10):
        a(f"v_pk_mul_f32 {v(CB+2*k,2)}, {v(CB+2*k,2)}, s[{sL}:{sL+1}] op_sel_hi:[1,0]")
    a(f"""
    s_waitcnt vmcnt(1)
    ds_write2st64_b32 v{x2}, v{PP[0]}, v{PP[1]} offset0:0 offset1:1
    ds_write2st64_b32 v{x2}, v{PP[2]}, v{PP[3]} offset0:2 offset1:3
    ds_write_b32 v{x2}, v{x3} offset:1024
    s_waitcnt lgkmcnt(0)
    s_barrier
    """)
    stamp(a, cfg, "k2", 9)
    gemm40(CB, CS, True, P[0], False)
    a(f"""
    v_mul_u32_u24 v{x1}, 171, v{x0}
    v_lshrrev_b32 v{x1}, 9, v{x1}
    v_add3_u32 v{x1}, v{x0}, v{x1}, 1
    v_lshrrev_b32 v{x2}, 5, v{x1}
    v_lshlrev_b32 v{x1}, 2, v{x1}
    v_lshl_add_u32 v{x1}, v{x2}, 7, v{x1}
    v_add_u32 v{x1}, {RING}, v{x1}
    s_cmp_ge_u32 s{sW}, 2
    s_cbranch_scc1 K2_nopp
    v_add_u32 v{x2}, 128, v{x1}
    """)
    for k in range(4):
        a(f"ds_read2st64_b32 {v(ACC+4*k,2)}, v{x1} offset0:{32*k} offset1:{32*k+16}")
        a(f"ds_read2st64_b32 {v(ACC+4*k+2,2)}, v{x2} offset0:{32*k} offset1:{32*k+16}")
    a(f"""
    K2_nopp:
    s_mov_b32 s{sT2}, {fbits(LN2_NEG)}
    v_lshrrev_b32 v{x2}, 5, v0
    v_and_b32 v{x3}, 31, v0
    v_mul_u32_u24 v{x2}, 528, v{x2}
    v_lshl_add_u32 v{x2}, v{x3}, 4, v{x2}
    s_mul_i32 s{sT1}, s{sB}, 20480
    v_lshl_add_u32 v{x3}, v0, 4, s{sT1}
    """)
    stamp(a, cfg, "k2", 10)
    E0 = P[0]
    for i in range(20):
        a(f"v_exp_f32 v{E0+i}, v{CB+i}")
    for i in range(0, 20, 2):
        a(f"v_pk_add_f32 {v(E0+i,2)}, {v(E0+i,2)}, 1.0 op_sel_hi:[1,0]")
    for i in range(20):
        a(f"v_rcp_f32 v{E0+i}, v{E0+i}")
    for i in range(0, 20, 2):
        a(f"v_pk_mul_f32 {v(E0+i,2)}, {v(E0+i,2)}, {v(CB+i,2)}")
    for i in range(10):
        a(f"v_lshlrev_b32 v{CB+2*i}, 16, v{HR+i}\nv_and_b32 v{CB+2*i+1}, 0xffff0000, v{HR+i}")
    for i in range(0, 20, 2):
        a(f"v_pk_fma_f32 {v(E0+i,2)}, {v(E0+i,2)}, s[{sT2}:{sT2+1}], {v(CB+i,2)} op_sel_hi:[1,0,1]")
    for i in range(10):
        a(f"v_cvt_pk_bf16_f32 v{T+i}, v{E0+2*i}, v{E0+2*i+1}")
    for q in range(4):
        a(f"ds_write_b64 v{vOB}, {v(T+2*q,2)} offset:{16*q}")
    a(f"""
    ds_write_b64 v{vOS}, {v(T+8,2)}
    s_mul_i32 s{sT0}, s{sB}, 240
    s_add_u32 s{sT0}, s{sT0}, 5120000
    v_lshl_add_u32 v{x0}, v{x0}, 1, s{sT0}
    v_add_u32 v{x4}, 8192, v{x3}
    v_add_u32 v{x5}, 16384, v{x3}
    s_waitcnt vmcnt(0) lgkmcnt(0)
    s_barrier
    ds_read_b128 {v(P[0],4)}, v{x2} offset:{HT}
    ds_read_b128 {v(P[0]+4,4)}, v{x2} offset:{HT+8448}
    s_cmp_ge_u32 s{sW}, 4
    s_cbranch_scc1 K2_o2
    ds_read_b128 {v(P[0]+8,4)}, v{x2} offset:{HT+2*8448}
    s_cmp_ge_u32 s{sW}, 2
    s_cbranch_scc1 K2_o3
    """)
    for n in (8, 4, 2):
        for k in range(0, n, 2):
            a(f"v_pk_add_f32 {v(ACC+k,2)}, {v(ACC+k,2)}, {v(ACC+n+k,2)}")
    a(f"""
    v_lshlrev_b32 v{vPOS}, 16, v{vPOS}
    v_add_f32 v{x7}, v{ACC}, v{ACC+1}
    v_fma_f32 v{x7}, v{x7}, s{sT2}, v{vPOS}
    v_cvt_pk_bf16_f32 v{x7}, v{x7}, v{x7}
    v_cmp_gt_u32 vcc, 120, v0
    s_mov_b64 exec, vcc
    global_store_short v{x0}, v{x7}, s[20:21] {ost}
    s_mov_b64 exec, -1
    K2_o3:
    s_waitcnt lgkmcnt(0)
    global_store_dwordx4 v{x5}, {v(P[0]+8,4)}, s[20:21] {ost}
    K2_o2:
    s_waitcnt lgkmcnt(0)
    global_store_dwordx4 v{x3}, {v(P[0],4)}, s[20:21] {ost}
    global_store_dwordx4 v{x4}, {v(P[0]+4,4)}, s[20:21] {ost}
    """)
    stamp(a, cfg, "k2", 11)
    stamp(a, cfg, "k2", 12, wait=True)
    stamp_flush(a, cfg, "k2", sWS)
    a("K2_exit:\ns_endpgm")

    for g in range(4):
        a(f"K2_x{g}:\nv_mov_b32 v{PP[g]}, v{x0}")
        wload(2, w2c[g + 1], w2c[g + 2])
        a(f"s_waitcnt vmcnt({2+w2s[g+1]})")
        if g < 3:
            a("s_branch K2_next")
    a("K2_next:")
    if prio == 1:
        setprio(2, None)
    a(f"""
    s_add_u32 s{sM}, s{sM}, s{sM}
    s_cbranch_scc1 K2_nextl
    s_cmp_eq_u32 s{sP}, 0
    s_cbranch_scc1 K2_g0
    s_branch K2_g1
    K2_nextl:
    s_cmp_eq_u32 s{sP}, 0
    s_cbranch_scc1 K2_l0
    s_branch K2_l1
    """)
    a(f"""
    K2_crest:
    s_lshr_b32 s{sT0}, s{sCO}, 5
    v_add_u32 v{vCB}, s{sT0}, v{vHB}
    v_add_u32 v{vCS}, s{sT0}, v{vHS}
    s_waitcnt vmcnt(0) lgkmcnt(0)
    """)
    a("\n".join(c_load(0) + c_read(0) + ["s_waitcnt vmcnt(0) lgkmcnt(0)"] + cm))
    a(f"""
    s_add_u32 s{sCO}, s{sCO}, 1024
    s_cmp_lt_u32 s{sCO}, 16384
    s_cbranch_scc1 K2_crest
    s_nop 7
    s_branch K2_cdone
    """)

    def spill_addr(greg):
        a(f"""
        s_lshl_b32 s{sSp}, s2, 3
        s_add_u32 s{sSp}, s{sSp}, s{sW}
        s_mul_i32 s{sSp}, s{sSp}, 5
        s_add_u32 s{sSp}, s{sSp}, s{greg}
        s_lshl_b32 s{sSp}, s{sSp}, 12
        s_add_u32 s{sSp}, s{sSp}, {WS_SPILL}
        """)

    def spill_load():
        for k in range(4):
            a(f"buffer_load_dwordx4 {v(ACC+4*k,4)}, v{vW16}, s[{sWS}:{sWS+3}], s{sSp} offen offset:{1024*k} sc1")
        a("s_waitcnt vmcnt(0)")
    a(f"""
    K2_nextw:
    s_waitcnt vmcnt(0) lgkmcnt(0)
    s_nop 7
    s_branch K2_next
    K2_again1:
    s_waitcnt vmcnt(0)
    s_branch K2_back1
    K2_over1:
    """)
    wload(0, w1c[3], w1c[4])
    a(f"""
    s_waitcnt vmcnt(0) lgkmcnt(0)
    s_branch K2_back2
    K2_slowstart:
    s_mov_b32 s{sR}, {SLOW_R}
    s_branch K2_setlast
    K2_nextpass:
    s_add_u32 s{sJ0}, s{sJ0}, {SLOW_R}
    K2_setlast:
    s_add_u32 s{sT0}, s{sJ0}, {SLOW_R}
    s_cmp_ge_u32 s{sT0}, s{sTmax}
    s_cselect_b32 s{sLast}, 1, 0
    s_waitcnt vmcnt(0) lgkmcnt(0)
    s_barrier
    """)
    zero_fill()
    a("s_branch K2_expand")
    a("K2_spill:\ns_nop 4")
    spill_addr(sG)
    for k in range(4):
        a(f"buffer_store_dwordx4 {v(ACC+4*k,4)}, v{vW16}, s[{sWS}:{sWS+3}], s{sSp} offen offset:{1024*k} sc1")
    a("s_waitcnt vmcnt(0)")
    for k in range(8):
        a(f"v_mov_b64 {v(ACC+2*k,2)}, 0")
    a(f"""
    s_add_u32 s{sG}, s{sG}, 1
    s_cmp_ge_u32 s{sG}, 5
    s_cbranch_scc1 K2_nextpass
    s_cmp_eq_u32 s{sJ0}, 0
    s_cbranch_scc1 K2_nextw
    """)
    spill_addr(sG)
    spill_load()
    a(f"""
    s_branch K2_nextw
    K2_reload:
    s_add_u32 s{sT0}, s{sG}, 1
    s_cmp_ge_u32 s{sT0}, 5
    s_cbranch_scc1 K2_flushb
    """)
    spill_addr(sT0)
    spill_load()
    a(f"s_branch K2_flushb\nK2_reload0:")
    spill_addr(sG)
    spill_load()
    a("s_branch K2_back3")
    return dict(vgpr=((al.n + 7) // 8) * 8, sgpr=100 if cfg.get("stamps") else 72, lds=K2_LDS, threads=512, grid=256)
```

```python
from asmlib import Asm, v, s
from common import *

HIST, STARTS, REC = 0, 1024, 2048
STG = REC + REC_STRIDE + 256
HT = STG + 80 * 272 + 256
WT = HT + 80 * 512
K1_LDS = WT + 65536
K1_THREADS = 896
assert HT % 512 == 0 and WT % 256 == 0 and K1_LDS <= 163840


def gen_k1(a: Asm, cfg):
    st = cfg.get("k1_store", "sc1")
    sWAVE, sRT, sHALF, sT0, sT1, sT2 = 36, 37, 38, 39, 42, 43
    sEDGE = 40
    sPOS = 24
    sTASK = 45
    vL = 1
    vX0, vX1, vX2, vX3 = 6, 7, 8, 9
    a.label(K1_NAME)
    a(f"""
    s_cmp_ge_u32 s2, 256
    s_cbranch_scc1 K1_exit
    s_load_dwordx16 s[4:19], s[0:1], 0
    s_load_dwordx2 s[20:21], s[0:1], 80
    """)
    stamp(a, cfg, "k1", 0)
    a(f"""
    v_lshrrev_b32 v{vX0}, 6, v0
    v_and_b32 v{vL}, 63, v0
    v_readfirstlane_b32 s{sWAVE}, v{vX0}
    s_and_b32 s{sT0}, s2, 7
    s_lshr_b32 s{sT1}, s2, 3
    s_and_b32 s{sHALF}, s{sT1}, 1
    s_lshr_b32 s{sT1}, s{sT1}, 1
    s_lshl_b32 s{sT1}, s{sT1}, 3
    s_add_u32 s{sRT}, s{sT1}, s{sT0}
    s_cmp_ge_u32 s{sWAVE}, 4
    s_cbranch_scc1 K1_sort
    """)
    vWA, vHA, vSB = 2, 10, 3
    vGH, vGW = 4, 5
    a(f"""
    v_lshlrev_b32 v{vX1}, 2, v0
    v_mov_b32 v{vX2}, 0
    ds_write_b32 v{vX1}, v{vX2}
    s_cmp_ge_u32 s{sRT}, 125
    s_cbranch_scc1 K1_idle
    v_lshrrev_b32 v{vX0}, 5, v{vL}
    v_and_b32 v{vX1}, 31, v{vL}
    s_mul_i32 s{sT0}, s{sWAVE}, 20
    v_add_u32 v{vX2}, s{sT0}, v{vX0}
    v_and_b32 v{vX3}, 15, v{vX2}
    v_xor_b32 v{vX3}, v{vX3}, v{vX1}
    s_mul_i32 s{sT1}, s{sRT}, 80
    v_add_u32 v{vX2}, s{sT1}, v{vX2}
    v_lshlrev_b32 v{vX2}, 9, v{vX2}
    v_lshrrev_b32 v{vX0}, 4, v{vL}
    v_and_b32 v{vX1}, 15, v{vL}
    v_lshlrev_b32 v{vGW}, 2, v{vX0}
    v_xor_b32 v{vX1}, v{vX1}, v{vGW}
    v_lshlrev_b32 v{vX1}, 4, v{vX1}
    v_lshl_add_u32 v{vX1}, v{vX0}, 9, v{vX1}
    s_lshl_b32 s{sT0}, s{sWAVE}, 15
    s_lshl_b32 s{sT1}, s{sHALF}, 8
    s_add_u32 s{sT0}, s{sT0}, s{sT1}
    s_add_u32 s{sT0}, s{sT0}, {256*512}
    v_add_u32 v{vGW}, s{sT0}, v{vX1}
    s_mul_i32 s{sT0}, s{sWAVE}, {20*512}
    s_add_u32 s{sT0}, s{sT0}, {HT}
    s_lshl_b32 s{sT1}, s{sWAVE}, 14
    s_add_u32 s{sT1}, s{sT1}, {WT}
    s_waitcnt lgkmcnt(0)
    s_barrier
    """)
    hl, wl = [], []
    for i in range(10):
        t = []
        if i:
            t.append(f"v_add_u32 v{vX2}, 1024, v{vX2}")
            t.append(f"v_lshrrev_b32 v{vX3}, 9, v{vX2}")
            t.append(f"v_and_b32 v{vX3}, 15, v{vX3}")
            t.append(f"v_and_b32 v{vX1}, 31, v{vL}")
            t.append(f"v_xor_b32 v{vX3}, v{vX3}, v{vX1}")
        t.append(f"s_add_u32 m0, s{sT0}, {1024*i}")
        t.append(f"v_lshl_add_u32 v{vGH}, v{vX3}, 4, v{vX2}")
        t.append(f"global_load_lds_dwordx4 v{vGH}, s[4:5]")
        hl.append(t)
    for i in range(16):
        t = [f"s_add_u32 m0, s{sT1}, {1024*i}"]
        t.append(f"v_add_u32 v{vGW}, 2048, v{vGW}" if i else "s_nop 0")
        t.append(f"global_load_lds_dwordx4 v{vGW}, s[14:15]")
        wl.append(t)
    for t in hl + wl:
        a("\n".join(t))
    a(f"""
    v_bfe_u32 v{vX0}, v{vL}, 2, 2
    v_lshrrev_b32 v{vX1}, 5, v{vL}
    v_lshl_add_u32 v{vX2}, v{vX1}, 3, v{vX0}
    v_lshlrev_b32 v{vWA}, 8, v{vX2}
    v_bfe_u32 v{vX2}, v{vL}, 4, 1
    v_bfe_u32 v{vX3}, v{vL}, 1, 1
    v_lshl_add_u32 v{vX2}, v{vX2}, 1, v{vX3}
    s_lshl_b32 s{sT0}, s{sWAVE}, 2
    v_add_u32 v{vX2}, s{sT0}, v{vX2}
    v_lshlrev_b32 v{vX0}, 2, v{vX0}
    v_xor_b32 v{vX2}, v{vX2}, v{vX0}
    v_lshl_add_u32 v{vWA}, v{vX2}, 4, v{vWA}
    v_and_b32 v{vX2}, 1, v{vL}
    v_lshl_add_u32 v{vWA}, v{vX2}, 3, v{vWA}
    v_add_u32 v{vWA}, {WT}, v{vWA}
    v_and_b32 v{vX0}, 31, v{vL}
    v_and_b32 v{vX2}, 15, v{vL}
    v_xor_b32 v{vX2}, v{vX2}, v{vX1}
    v_lshlrev_b32 v{vX2}, 4, v{vX2}
    v_lshl_add_u32 v{vX2}, v{vX0}, 9, v{vX2}
    v_add_u32 v{vHA}, {HT}, v{vX2}
    """)
    for k in range(1, 8):
        a(f"v_xor_b32 v{vHA+k}, {32*k}, v{vHA}")
    a(f"""
    v_mul_u32_u24 v{vX0}, 272, v{vX0}
    s_lshl_b32 s{sT0}, s{sWAVE}, 6
    s_add_u32 s{sT0}, s{sT0}, {STG}
    v_lshl_add_u32 v{vX1}, v{vX1}, 3, s{sT0}
    v_add_u32 v{vSB}, v{vX0}, v{vX1}
    s_mov_b32 s46, {fbits(LOG2E_NEG)}
    s_waitcnt vmcnt(0)
    """)
    stamp(a, cfg, "k1", 1)
    a("s_barrier")
    stamp(a, cfg, "k1", 2)
    AC, FR = 68, 20

    def rd(t):
        b = FR + 16 * (t % 3)
        a(f"ds_read_b64_tr_b16 {v(b,2)}, v{vWA} offset:{4096*t}")
        a(f"ds_read_b64_tr_b16 {v(b+2,2)}, v{vWA} offset:{4096*t+1024}")
        for r in range(3):
            a(f"ds_read_b128 {v(b+4+4*r,4)}, v{vHA+(t&7)} offset:{16384*r+256*(t>>3)}")
    rd(0)
    rd(1)
    for t in range(16):
        a(f"s_waitcnt lgkmcnt({5 if t < 15 else 0})")
        b = FR + 16 * (t % 3)
        for r in range(3):
            a(f"v_mfma_f32_32x32x16_bf16 {v(AC+16*r,16)}, {v(b,4)}, {v(b+4+4*r,4)}, {'0' if t == 0 else v(AC+16*r,16)}")
            if r == 0 and t + 2 < 16:
                rd(t + 2)
    stamp(a, cfg, "k1", 3)
    a("s_nop 7\ns_nop 1")
    for r in range(3):
        if r == 2:
            a("s_mov_b32 exec_lo, 0xffff\ns_mov_b32 exec_hi, 0xffff")
        for k in range(8):
            a(f"v_pk_mul_f32 {v(AC+16*r+2*k,2)}, {v(AC+16*r+2*k,2)}, s[46:47] op_sel_hi:[1,0]")
        for k in range(8):
            a(f"v_cvt_pk_bf16_f32 v{FR+8*r+k}, v{AC+16*r+2*k}, v{AC+16*r+2*k+1}")
        for q in range(4):
            a(f"ds_write_b64 v{vSB}, {v(FR+8*r+2*q,2)} offset:{32*272*r+16*q}")
    a("s_mov_b64 exec, -1\ns_branch K1_join")
    a("K1_idle:\ns_waitcnt lgkmcnt(0)\ns_barrier\ns_barrier\ns_branch K1_join")

    vDST, vSRC, vEA = 2, 3, 4
    vPD, vPS = 10, 12
    vBK, vDL, vRK = 14, 15, 16
    vF = 36
    vC = 44
    a(f"""
    K1_sort:
    v_subrev_u32 v{vX0}, 256, v0
    v_cmp_gt_u32 vcc, 625, v{vX0}
    s_mul_i32 s{sT0}, s2, 625
    v_min_u32 v{vX0}, 624, v{vX0}
    v_add_u32 v{vX0}, s{sT0}, v{vX0}
    s_mov_b64 s[{sEDGE}:{sEDGE+1}], vcc
    v_lshlrev_b32 v{vX1}, 2, v{vX0}
    v_lshlrev_b32 v{vX2}, 3, v{vX0}
    s_mov_b32 s{sPOS+2}, 60000
    s_mov_b32 s{sPOS+3}, 0x20000
    s_lshl_b32 s{sTASK}, s2, 1
    s_add_u32 s{sTASK}, s{sTASK}, s{sWAVE}
    s_sub_u32 s{sTASK}, s{sTASK}, 4
    s_cmp_ge_u32 s{sWAVE}, 6
    s_cselect_b32 s{sTASK}, 1000, s{sTASK}
    v_mov_b32 v{vX3}, 1
    s_waitcnt lgkmcnt(0)
    global_load_dword v{vDST}, v{vX1}, s[12:13]
    global_load_dword v{vSRC}, v{vX1}, s[10:11]
    s_barrier
    s_mov_b32 s{sPOS}, s6
    s_mov_b32 s{sPOS+1}, s7
    s_waitcnt vmcnt(0)
    """)
    a(f"""
    v_mul_u32_u24 v{vX0}, 6, v{vDST}
    v_mul_u32_u24 v{vX1}, 6, v{vSRC}
    v_mul_u32_u24 v{vBK}, {52429}, v{vDST}
    v_and_b32 v{vX0}, -4, v{vX0}
    v_and_b32 v{vX1}, -4, v{vX1}
    v_lshrrev_b32 v{vBK}, 21, v{vBK}
    v_mul_u32_u24 v{vDL}, 40, v{vBK}
    v_lshlrev_b32 v{vBK}, 2, v{vBK}
    s_mov_b64 exec, s[{sEDGE}:{sEDGE+1}]
    ds_add_rtn_u32 v{vRK}, v{vBK}, v{vX3}
    s_mov_b64 exec, -1
    buffer_load_dwordx2 v[{vPD}:{vPD+1}], v{vX0}, s[{sPOS}:{sPOS+3}], 0 offen
    buffer_load_dwordx2 v[{vPS}:{vPS+1}], v{vX1}, s[{sPOS}:{sPOS+3}], 0 offen
    global_load_dwordx2 v[{vEA}:{vEA+1}], v{vX2}, s[8:9]
    v_sub_u32 v{vDL}, v{vDST}, v{vDL}
    v_lshl_or_b32 v{vDL}, v{vSRC}, 16, v{vDL}
    s_cmp_ge_u32 s{sTASK}, 392
    s_cbranch_scc1 K1_notask
    """)
    a(f"""
    s_cmp_lt_u32 s{sTASK}, 128
    s_cselect_b32 s46, s14, s18
    s_cselect_b32 s47, s15, s19
    s_cmp_ge_u32 s{sTASK}, 256
    s_cselect_b32 s{sT0}, {256*512}, 0
    s_and_b32 s{sT1}, s{sTASK}, 15
    s_lshl_b32 s{sT1}, s{sT1}, 13
    s_add_u32 s{sT0}, s{sT0}, s{sT1}
    s_bfe_u32 s{sT1}, s{sTASK}, 0x30004
    s_lshl_b32 s{sT1}, s{sT1}, 6
    s_add_u32 s{sT0}, s{sT0}, s{sT1}
    v_lshrrev_b32 v{vX0}, 5, v{vL}
    v_and_b32 v{vX1}, 31, v{vL}
    v_lshlrev_b32 v{vX2}, 12, v{vX0}
    s_cmp_lt_u32 s{sTASK}, 384
    s_cbranch_scc1 K1_nokc
    v_lshlrev_b32 v{vX2}, 9, v{vX0}
    v_sub_u32 v{vX2}, 0, v{vX2}
    s_sub_u32 s{sT0}, s{sTASK}, 384
    s_lshl_b32 s{sT0}, s{sT0}, 6
    s_add_u32 s{sT0}, s{sT0}, {509*512}
    s_mov_b32 s46, s14
    s_mov_b32 s47, s15
    K1_nokc:
    v_lshl_add_u32 v{vX1}, v{vX1}, 1, v{vX2}
    v_add_u32 v{vX1}, s{sT0}, v{vX1}
    """)
    for j in range(8):
        a(f"global_load_ushort v{vF+j}, v{vX1}, s[46:47] offset:{512*j}")
    a(f"""
    K1_notask:
    v_lshlrev_b32 v{vX2}, 4, v{vL}
    s_waitcnt lgkmcnt(0)
    """)
    stamp(a, cfg, "k1", 1)
    a("s_barrier")
    stamp(a, cfg, "k1", 2)
    c0, sm, inc, o0 = vC, vC + 4, vC + 5, vC + 8
    a(f"""
    ds_read_b128 {v(c0,4)}, v{vX2} offset:{HIST}
    s_waitcnt lgkmcnt(0)
    v_add3_u32 v{sm}, v{c0}, v{c0+1}, v{c0+2}
    v_add_u32 v{sm}, v{sm}, v{c0+3}
    v_mov_b32 v{inc}, v{sm}
    """)
    scan(a, inc, "v_add_u32", 64)
    a(f"""
    v_sub_u32 v{o0}, v{inc}, v{sm}
    v_add_u32 v{o0+1}, v{o0}, v{c0}
    v_add_u32 v{o0+2}, v{o0+1}, v{c0+1}
    v_add_u32 v{o0+3}, v{o0+2}, v{c0+2}
    ds_write_b128 v{vX2}, {v(o0,4)} offset:{STARTS}
    ds_read_b32 v{vBK}, v{vBK} offset:{STARTS}
    v_and_b32 v{vX0}, 1, v{vDST}
    v_and_b32 v{vX1}, 1, v{vSRC}
    v_lshlrev_b32 v{vX0}, 4, v{vX0}
    v_lshlrev_b32 v{vX1}, 4, v{vX1}
    s_waitcnt vmcnt(0)
    """)
    stamp(a, cfg, "k1", 3)
    t0, t1, t2, t3, t4, t5 = range(20, 26)
    HI = "0xffff0000"
    a(f"""
    v_alignbit_b32 v{vPD}, v{vPD+1}, v{vPD}, v{vX0}
    v_alignbit_b32 v{vPS}, v{vPS+1}, v{vPS}, v{vX1}
    v_lshrrev_b32 v{vPD+1}, v{vX0}, v{vPD+1}
    v_lshrrev_b32 v{vPS+1}, v{vX1}, v{vPS+1}
    v_lshlrev_b32 v{t0}, 16, v{vPD}
    v_lshlrev_b32 v{t1}, 16, v{vPS}
    v_and_b32 v{t2}, {HI}, v{vPD}
    v_and_b32 v{t3}, {HI}, v{vPS}
    v_lshlrev_b32 v{t4}, 16, v{vPD+1}
    v_lshlrev_b32 v{t5}, 16, v{vPS+1}
    v_sub_f32 v{t0}, v{t0}, v{t1}
    v_sub_f32 v{t2}, v{t2}, v{t3}
    v_sub_f32 v{t4}, v{t4}, v{t5}
    v_cvt_pk_bf16_f32 v{t0}, v{t0}, v{t0}
    v_cvt_pk_bf16_f32 v{vPS}, v{t2}, v{t4}
    v_lshlrev_b32 v{t0}, 16, v{t0}
    v_lshlrev_b32 v{t2}, 16, v{vPS}
    v_and_b32 v{t4}, {HI}, v{vPS}
    v_mul_f32 v{t1}, v{t0}, v{t0}
    v_mul_f32 v{t2}, v{t2}, v{t2}
    v_mul_f32 v{t4}, v{t4}, v{t4}
    v_cvt_pk_bf16_f32 v{t1}, v{t1}, v{t2}
    v_cvt_pk_bf16_f32 v{t4}, v{t4}, v{t4}
    v_lshlrev_b32 v{t2}, 16, v{t1}
    v_and_b32 v{t1}, {HI}, v{t1}
    v_lshlrev_b32 v{t4}, 16, v{t4}
    v_add_f32 v{t1}, v{t1}, v{t2}
    v_add_f32 v{t1}, v{t1}, v{t4}
    v_cvt_pk_bf16_f32 v{vPD}, v{t1}, v{t0}
    s_waitcnt lgkmcnt(0)
    v_add_u32 v{vBK}, v{vBK}, v{vRK}
    v_mul_u32_u24 v{vBK}, 20, v{vBK}
    v_add_u32 v{vBK}, {REC}, v{vBK}
    s_mov_b64 exec, s[{sEDGE}:{sEDGE+1}]
    ds_write2_b32 v{vBK}, v{vEA}, v{vEA+1} offset0:0 offset1:1
    ds_write2_b32 v{vBK}, v{vPD}, v{vDL} offset0:2 offset1:3
    ds_write_b32 v{vBK}, v{vPS} offset:16
    s_mov_b64 exec, -1
    s_cmp_lg_u32 s{sWAVE}, 6
    s_cbranch_scc1 K1_nooff
    v_lshl_or_b32 v{o0}, v{c0}, 16, v{o0}
    v_lshl_or_b32 v{o0+1}, v{c0+1}, 16, v{o0+1}
    v_lshl_or_b32 v{o0+2}, v{c0+2}, 16, v{o0+2}
    v_lshl_or_b32 v{o0+3}, v{c0+3}, 16, v{o0+3}
    s_lshl_b32 s{sT0}, s2, 10
    s_add_u32 s{sT0}, s{sT0}, {WS_OFF}
    v_add_u32 v{vX1}, s{sT0}, v{vX2}
    global_store_dwordx4 v{vX1}, {v(o0,4)}, s[20:21] {st}
    K1_nooff:
    s_cmp_ge_u32 s{sTASK}, 392
    s_cbranch_scc1 K1_join
    s_cmp_ge_u32 s{sTASK}, 384
    s_cbranch_scc1 K1_kc
    v_lshl_or_b32 v{vF}, v{vF+1}, 16, v{vF}
    v_lshl_or_b32 v{vF+1}, v{vF+3}, 16, v{vF+2}
    v_lshl_or_b32 v{vF+2}, v{vF+5}, 16, v{vF+4}
    v_lshl_or_b32 v{vF+3}, v{vF+7}, 16, v{vF+6}
    s_lshl_b32 s{sT0}, s{sTASK}, 10
    s_add_u32 s{sT0}, s{sT0}, {WS_WF}
    v_add_u32 v{vX0}, s{sT0}, v{vX2}
    global_store_dwordx4 v{vX0}, {v(vF,4)}, s[20:21] {st}
    s_branch K1_join
    K1_kc:
    v_cmp_gt_u32 vcc, 32, v{vL}
    v_mov_b32 v{vX1}, {fbits(LOG2E_NEG)}
    v_lshlrev_b32 v{vF+4}, 16, v{vF+4}
    v_lshlrev_b32 v{vF+5}, 16, v{vF+5}
    v_cndmask_b32_e64 v{vX0}, 0, v{vX1}, vcc
    v_lshlrev_b32 v{vF+6}, 16, v{vF+6}
    v_lshlrev_b32 v{vF+7}, 16, v{vF+7}
    v_mul_f32 v{vF+4}, v{vX1}, v{vF+4}
    v_mul_f32 v{vF+5}, v{vX0}, v{vF+5}
    v_mul_f32 v{vF+6}, v{vX0}, v{vF+6}
    v_mul_f32 v{vF+7}, v{vX0}, v{vF+7}
    v_cvt_pk_bf16_f32 v{vF}, v{vF+4}, v{vF+5}
    v_cvt_pk_bf16_f32 v{vF+1}, v{vF+6}, v{vF+7}
    s_sub_u32 s{sT0}, s{sTASK}, 384
    s_lshl_b32 s{sT0}, s{sT0}, 9
    s_add_u32 s{sT0}, s{sT0}, {WS_KC}
    v_lshl_add_u32 v{vX0}, v{vL}, 3, s{sT0}
    global_store_dwordx2 v{vX0}, {v(vF,2)}, s[20:21] {st}
    """)
    a(f"""
    K1_join:
    v_lshrrev_b32 v2, 4, v0
    v_and_b32 v3, 15, v0
    v_mul_u32_u24 v4, 272, v2
    v_lshl_add_u32 v4, v3, 4, v4
    v_lshlrev_b32 v2, 9, v2
    v_lshl_add_u32 v2, v3, 4, v2
    s_mul_i32 s{sT0}, s{sRT}, {80*512}
    s_lshl_b32 s{sT1}, s{sHALF}, 8
    s_add_u32 s{sT0}, s{sT0}, s{sT1}
    s_add_u32 s{sT0}, s{sT0}, {WS_B}
    v_add_u32 v2, s{sT0}, v2
    v_add_u32 v3, {56*512}, v2
    v_lshlrev_b32 v5, 4, v0
    s_mul_i32 s{sT0}, s2, {REC_STRIDE}
    s_add_u32 s{sT0}, s{sT0}, {WS_REC - 112*16}
    v_add_u32 v6, s{sT0}, v5
    v_cmp_le_u32 vcc, 112, v0
    s_waitcnt lgkmcnt(0)
    """)
    stamp(a, cfg, "k1", 4)
    a("s_barrier")
    stamp(a, cfg, "k1", 5)
    a(f"""
    ds_read_b128 v[8:11], v4 offset:{STG}
    ds_read_b128 v[12:15], v4 offset:{STG+56*272}
    ds_read_b128 v[16:19], v5 offset:{REC-112*16}
    s_cmp_ge_u32 s{sRT}, 125
    s_cbranch_scc1 K1_nob
    s_waitcnt lgkmcnt(2)
    global_store_dwordx4 v2, v[8:11], s[20:21] {st}
    s_cmp_ge_u32 s{sWAVE}, 6
    s_cbranch_scc1 K1_nob
    s_waitcnt lgkmcnt(1)
    global_store_dwordx4 v3, v[12:15], s[20:21] {st}
    K1_nob:
    s_and_b64 exec, exec, vcc
    s_cbranch_execz K1_done
    s_waitcnt lgkmcnt(0)
    global_store_dwordx4 v6, v[16:19], s[20:21] {st}
    K1_done:
    """)
    stamp(a, cfg, "k1", 6, wait=True)
    stamp_flush(a, cfg, "k1", 20)
    a("K1_exit:\ns_endpgm")
    return dict(vgpr=120, sgpr=100 if cfg.get('stamps') else 64, lds=K1_LDS, threads=K1_THREADS, grid=256)
```

```python
import sys, json
from common import *
from asmlib import Asm
import build as B

def body(which, mult, nw1):
    a = Asm()
    a("s_cmp_lg_u32 s2, 0\ns_cbranch_scc1 DG_end\ns_load_dwordx2 s[4:5], s[0:1], 80\ns_waitcnt lgkmcnt(0)")
    for n, (k, idx, op) in enumerate((which[:3], which[3:])):
        off = WS_STAMP + (0 if k == 1 else 1 << 20) + 4 * idx
        acc = 4 + n
        first = True
        nw = nw1 if k == 1 else 8
        for blk in range(4):
            a(f"v_lshlrev_b32 v1, 10, v0\nv_add_u32 v1, {off + blk*65536}, v1")
            if k == 2:
                a(f"v_add_u32 v2, {64*blk}, v0\nv_and_b32 v3, 7, v2\nv_lshlrev_b32 v3, 5, v3\nv_lshrrev_b32 v2, 3, v2\nv_add_u32 v2, v2, v3\nv_cmp_gt_u32 vcc, 250, v2\nv_mov_b32 v2, {off}\ns_nop 1\nv_cndmask_b32_e64 v1, v2, v1, vcc")
            for w in range(nw):
                a(f"global_load_dword v2, v1, s[4:5] offset:{64*w}\ns_waitcnt vmcnt(0)")
                if first:
                    a(f"v_mov_b32 v{acc}, v2"); first = False
                else:
                    a(f"v_{op}_u32 v{acc}, v{acc}, v2")
        if op == "min":
            a(f"v_not_b32 v{acc}, v{acc}")
        scan(a, acc, "v_max_u32", 64)
        a(f"s_nop 1\nv_readlane_b32 s{6+n}, v{acc}, 63")
        if op == "min":
            a(f"s_nop 3\ns_not_b32 s{6+n}, s{6+n}")
    a(f"""s_nop 3
    s_sub_u32 s8, s7, s6
    s_min_u32 s8, s8, 10000
    s_mul_i32 s8, s8, {mult}
    s_memrealtime s[10:11]
    s_waitcnt lgkmcnt(0)
    s_add_u32 s8, s8, s10
    DG_wait:
    s_memrealtime s[10:11]
    s_waitcnt lgkmcnt(0)
    s_sub_u32 s9, s8, s10
    s_cmp_gt_i32 s9, 0
    s_cbranch_scc1 DG_wait
    DG_end:""")
    return a.text()

if __name__ == "__main__":
    cfg = json.loads(sys.argv[1]) if len(sys.argv) > 1 else {}
    cfg.update(stamps="rt", extra_empty=1)
    for name, which, mult in (("zero", (1, 0, "min", 1, 0, "min"), 20), ("k1", (1, 0, "min", 1, 6, "max"), 20), ("gap", (1, 6, "max", 2, 0, "min"), 20),
                              ("k2", (2, 0, "min", 2, 12, "max"), 20), ("k1a", (1, 0, "min", 1, 2, "max"), 20), ("k2a", (2, 0, "min", 2, 7, "max"), 20)):
        cfg["extra_body"] = body(which, mult, 14)
        open(f"dg_{name}.s", "w").write(B.build(cfg))
```

```python
import struct
from asmlib import v, s

NAME = "gather_scatter__cheap_equivariant_egnn__graph"
K1_NAME = "egnn_prep_kernel"
K2_NAME = NAME + "_kernel"

LOG2E_NEG = -1.4426950408889634
LN2_NEG = -0.6931471805599453

REC_STRIDE = 12544
import os
WS_BASE = int(os.environ.get('WS_BASE_MB', '0')) << 20
WS_B = WS_BASE + 4096
WS_REC = WS_BASE + 5242880
WS_OFF = WS_REC + 256 * REC_STRIDE
WS_WF = WS_OFF + 256 * 1024
WS_KC = WS_WF + 384 * 1024
WS_SPILL = WS_KC + 8192
WS_END = WS_SPILL + 256 * 8 * 5 * 4096
WS_STAMP = 250 << 20 if WS_BASE else 64 << 20


def fbits(x):
    return "0x%08x" % struct.unpack("<I", struct.pack("<f", x))[0]


def scan(a, r, op, width):
    for sh in (1, 2, 4, 8):
        a(f"s_nop 1\n{op}_dpp v{r}, v{r}, v{r} row_shr:{sh} row_mask:0xf bank_mask:0xf bound_ctrl:1")
    a(f"s_nop 1\n{op}_dpp v{r}, v{r}, v{r} row_bcast:15 row_mask:0xa bank_mask:0xf")
    if width == 64:
        a(f"s_nop 1\n{op}_dpp v{r}, v{r}, v{r} row_bcast:31 row_mask:0xc bank_mask:0xf")


def scan2(a, r0, r1, op):
    a("s_nop 0")
    for sh in (1, 2, 4, 8):
        a(f"{op}_dpp v{r0}, v{r0}, v{r0} row_shr:{sh} row_mask:0xf bank_mask:0xf bound_ctrl:1")
        a(f"{op}_dpp v{r1}, v{r1}, v{r1} row_shr:{sh} row_mask:0xf bank_mask:0xf bound_ctrl:1")
        a("s_nop 0")
    for bc, rm in ((15, "0xa"), (31, "0xc")):
        a(f"{op}_dpp v{r0}, v{r0}, v{r0} row_bcast:{bc} row_mask:{rm} bank_mask:0xf")
        a(f"{op}_dpp v{r1}, v{r1}, v{r1} row_bcast:{bc} row_mask:{rm} bank_mask:0xf")
        a("s_nop 0")


def node_addrs(a, vL, vHB, vHS, X, sRow0, base, stride, zero, sT1):
    x0, x1, x2, x3 = X
    if sRow0 is not None:
        a(f"s_mul_i32 s{sT1}, s{sRow0}, {stride}\ns_add_u32 s{sT1}, s{sT1}, {base}")
    else:
        a(f"s_mov_b32 s{sT1}, {base}")
    a(f"""
    v_and_b32 v{x0}, 31, v{vL}
    v_lshrrev_b32 v{x1}, 5, v{vL}
    v_mul_u32_u24 v{x0}, {stride}, v{x0}
    v_lshl_add_u32 v{x1}, v{x1}, 4, s{sT1}
    v_add_u32 v{vHB}, v{x0}, v{x1}
    v_bfe_u32 v{x0}, v{vL}, 3, 1
    v_and_b32 v{x2}, 3, v{vL}
    v_lshl_add_u32 v{x0}, v{x0}, 2, v{x2}
    v_mul_u32_u24 v{x0}, {stride}, v{x0}
    v_lshrrev_b32 v{x2}, 2, v{vL}
    v_lshrrev_b32 v{x3}, 4, v{vL}
    v_xor_b32 v{x2}, v{x2}, v{x3}
    v_and_b32 v{x2}, 1, v{x2}
    v_cmp_eq_u32 vcc, 0, v{x2}
    v_add_u32 v{x0}, v{x0}, v{x1}
    v_add_u32 v{x0}, {32*stride}, v{x0}
    v_mov_b32 v{x1}, {zero}
    v_cndmask_b32_e64 v{vHS}, v{x1}, v{x0}, vcc
    """)


def out_addrs(a, vL, vSB, vSS, X, sRow0, base, stride, sCol, sT1):
    x0, x1, x2, x3 = X
    if sRow0 is not None:
        a(f"s_mul_i32 s{sT1}, s{sRow0}, {stride}\ns_add_u32 s{sT1}, s{sT1}, s{sCol}\ns_add_u32 s{sT1}, s{sT1}, {base}")
    else:
        a(f"s_add_u32 s{sT1}, s{sCol}, {base}")
    a(f"""
    v_and_b32 v{x0}, 31, v{vL}
    v_lshrrev_b32 v{x1}, 5, v{vL}
    v_mul_u32_u24 v{x0}, {stride}, v{x0}
    v_lshl_add_u32 v{x1}, v{x1}, 3, s{sT1}
    v_add_u32 v{vSB}, v{x0}, v{x1}
    v_bfe_u32 v{x0}, v{vL}, 3, 1
    v_and_b32 v{x2}, 3, v{vL}
    v_lshl_add_u32 v{x0}, v{x0}, 2, v{x2}
    v_mul_u32_u24 v{x0}, {stride}, v{x0}
    v_bfe_u32 v{x2}, v{vL}, 2, 1
    v_lshrrev_b32 v{x3}, 4, v{vL}
    v_lshl_add_u32 v{x0}, v{x2}, 5, v{x0}
    v_lshl_add_u32 v{x0}, v{x3}, 3, v{x0}
    s_add_u32 s{sT1}, s{sT1}, {32*stride}
    v_add_u32 v{vSS}, s{sT1}, v{x0}
    """)


STAMP0 = 70


def stamp(a, cfg, k, i, wait=False):
    if not cfg.get("stamps"):
        return
    if cfg.get("stamp_only") and [k, i] not in cfg["stamp_only"]:
        return
    if wait:
        a("s_waitcnt vmcnt(0)")
    a(f"s_memrealtime s[{STAMP0+2*i}:{STAMP0+2*i+1}]" if cfg.get("stamps") == "rt" else f"s_memtime s[{STAMP0+2*i}:{STAMP0+2*i+1}]")
    if cfg.get("stamp_wait", True) and i > 0:
        a("s_waitcnt lgkmcnt(0)")


def stamp_flush(a, cfg, k, sWS, n=14):
    if not cfg.get("stamps"):
        return
    off = WS_STAMP + (0 if k == "k1" else 1 << 20)
    a(f"""
    s_waitcnt lgkmcnt(0)
    s_mov_b64 exec, -1
    v_lshrrev_b32 v2, 6, v0
    s_lshl_b32 s3, s2, 4
    v_add_u32 v2, s3, v2
    v_lshlrev_b32 v2, 6, v2
    v_add_u32 v2, {off}, v2
    """)
    for i in range(n):
        a(f"v_mov_b32 v3, s{STAMP0+2*i}\nglobal_store_dword v2, v3, s[{sWS}:{sWS+1}] offset:{4*i}")
    a("s_waitcnt vmcnt(0)")
```

```python
from asmlib import Asm, v, s
from common import *

HIST, STARTS, REC = 0, 1024, 2048
STG = REC + REC_STRIDE + 256
HT = STG + 80 * 272 + 256
WT = HT + 80 * 512
K1_LDS = WT + 65536
K1_THREADS = 896
assert HT % 512 == 0 and WT % 256 == 0 and K1_LDS <= 163840


def gen_k1(a: Asm, cfg):
    st = cfg.get("k1_store", "sc1")
    sWAVE, sRT, sHALF, sT0, sT1, sT2 = 36, 37, 38, 39, 42, 43
    sEDGE = 40
    sPOS = 24
    sTASK = 45
    vL = 1
    vX0, vX1, vX2, vX3 = 6, 7, 8, 9
    vOB0, vOB1, vOR, vOL = 116, 117, 118, 119
    pw = cfg.get("prewrite", 0)

    def out_setup():
        a(f"""
        v_lshrrev_b32 v{vOB0}, 4, v0
        v_and_b32 v{vOB1}, 15, v0
        v_mul_u32_u24 v{vOL}, 272, v{vOB0}
        v_lshl_add_u32 v{vOL}, v{vOB1}, 4, v{vOL}
        v_lshlrev_b32 v{vOB0}, 9, v{vOB0}
        v_lshl_add_u32 v{vOB0}, v{vOB1}, 4, v{vOB0}
        s_mul_i32 s{sT0}, s{sRT}, {80*512}
        s_lshl_b32 s{sT1}, s{sHALF}, 8
        s_add_u32 s{sT0}, s{sT0}, s{sT1}
        s_add_u32 s{sT0}, s{sT0}, {WS_B}
        v_add_u32 v{vOB0}, s{sT0}, v{vOB0}
        v_add_u32 v{vOB1}, {56*512}, v{vOB0}
        s_mul_i32 s{sT0}, s2, {REC_STRIDE}
        s_add_u32 s{sT0}, s{sT0}, {WS_REC - 112*16}
        v_lshl_add_u32 v{vOR}, v0, 4, s{sT0}
        """)

    def stores(d0, d1, d2, waits, tag):
        w = (lambda n: f"s_waitcnt lgkmcnt({n})") if waits else (lambda n: "")
        a(f"""
        v_cmp_le_u32 vcc, 112, v0
        s_cmp_ge_u32 s{sRT}, 125
        s_cbranch_scc1 K1_nob{tag}
        {w(2)}
        global_store_dwordx4 v{vOB0}, {v(d0,4)}, s[20:21] {st}
        s_cmp_ge_u32 s{sWAVE}, 6
        s_cbranch_scc1 K1_nob{tag}
        {w(1)}
        global_store_dwordx4 v{vOB1}, {v(d1,4)}, s[20:21] {st}
        K1_nob{tag}:
        s_and_b64 exec, exec, vcc
        s_cbranch_execz K1_done{tag}
        {w(0)}
        global_store_dwordx4 v{vOR}, {v(d2,4)}, s[20:21] {st}
        K1_done{tag}:
        s_mov_b64 exec, -1
        """)
    a.label(K1_NAME)
    a(f"""
    s_cmp_ge_u32 s2, 256
    s_cbranch_scc1 K1_exit
    s_load_dwordx16 s[4:19], s[0:1], 0
    s_load_dwordx2 s[20:21], s[0:1], 80
    """)
    stamp(a, cfg, "k1", 0)
    if cfg.get("cpf", 0):
        a(f"""
        s_getpc_b64 s[48:49]
        K1_pc:
        v_lshlrev_b32 v62, 7, v0
        v_cmp_gt_u32 vcc, (K2_crest-K1_pc)/128, v0
        s_and_saveexec_b64 s[50:51], vcc
        s_cbranch_execz K1_nopf
        global_load_dword v63, v62, s[48:49]
        K1_nopf:
        s_mov_b64 exec, s[50:51]
        """)
    a(f"""
    v_lshrrev_b32 v{vX0}, 6, v0
    v_and_b32 v{vL}, 63, v0
    v_readfirstlane_b32 s{sWAVE}, v{vX0}
    s_and_b32 s{sT0}, s2, 7
    s_lshr_b32 s{sT1}, s2, 3
    s_and_b32 s{sHALF}, s{sT1}, 1
    s_lshr_b32 s{sT1}, s{sT1}, 1
    s_lshl_b32 s{sT1}, s{sT1}, 3
    s_add_u32 s{sRT}, s{sT1}, s{sT0}
    """)
    out_setup()
    if pw == 1:
        a("s_waitcnt lgkmcnt(0)")
        stores(112, 112, 112, False, "p")
    a(f"""
    s_cmp_ge_u32 s{sWAVE}, 4
    s_cbranch_scc1 K1_sort
    """)
    vWA, vHA, vSB = 2, 10, 3
    vGH, vGW = 4, 5
    a(f"""
    v_lshlrev_b32 v{vX1}, 2, v0
    v_mov_b32 v{vX2}, 0
    ds_write_b32 v{vX1}, v{vX2}
    s_cmp_ge_u32 s{sRT}, 125
    s_cbranch_scc1 K1_idle
    v_lshrrev_b32 v{vX0}, 5, v{vL}
    v_and_b32 v{vX1}, 31, v{vL}
    s_mul_i32 s{sT0}, s{sWAVE}, 20
    v_add_u32 v{vX2}, s{sT0}, v{vX0}
    v_and_b32 v{vX3}, 15, v{vX2}
    v_xor_b32 v{vX3}, v{vX3}, v{vX1}
    s_mul_i32 s{sT1}, s{sRT}, 80
    v_add_u32 v{vX2}, s{sT1}, v{vX2}
    v_lshlrev_b32 v{vX2}, 9, v{vX2}
    v_lshrrev_b32 v{vX0}, 4, v{vL}
    v_and_b32 v{vX1}, 15, v{vL}
    v_lshlrev_b32 v{vGW}, 2, v{vX0}
    v_xor_b32 v{vX1}, v{vX1}, v{vGW}
    v_lshlrev_b32 v{vX1}, 4, v{vX1}
    v_lshl_add_u32 v{vX1}, v{vX0}, 9, v{vX1}
    s_lshl_b32 s{sT0}, s{sWAVE}, 15
    s_lshl_b32 s{sT1}, s{sHALF}, 8
    s_add_u32 s{sT0}, s{sT0}, s{sT1}
    s_add_u32 s{sT0}, s{sT0}, {256*512}
    v_add_u32 v{vGW}, s{sT0}, v{vX1}
    s_mul_i32 s{sT0}, s{sWAVE}, {20*512}
    s_add_u32 s{sT0}, s{sT0}, {HT}
    s_lshl_b32 s{sT1}, s{sWAVE}, 14
    s_add_u32 s{sT1}, s{sT1}, {WT}
    s_waitcnt lgkmcnt(0)
    s_barrier
    """)
    hl, wl = [], []
    for i in range(10):
        t = []
        if i:
            t.append(f"v_add_u32 v{vX2}, 1024, v{vX2}")
            t.append(f"v_lshrrev_b32 v{vX3}, 9, v{vX2}")
            t.append(f"v_and_b32 v{vX3}, 15, v{vX3}")
            t.append(f"v_and_b32 v{vX1}, 31, v{vL}")
            t.append(f"v_xor_b32 v{vX3}, v{vX3}, v{vX1}")
        t.append(f"s_add_u32 m0, s{sT0}, {1024*i}")
        t.append(f"v_lshl_add_u32 v{vGH}, v{vX3}, 4, v{vX2}")
        t.append(f"global_load_lds_dwordx4 v{vGH}, s[4:5]")
        hl.append(t)
    for i in range(16):
        t = [f"s_add_u32 m0, s{sT1}, {1024*i}"]
        t.append(f"v_add_u32 v{vGW}, 2048, v{vGW}" if i else "s_nop 0")
        t.append(f"global_load_lds_dwordx4 v{vGW}, s[14:15]")
        wl.append(t)
    for t in hl + wl:
        a("\n".join(t))
    a(f"""
    v_bfe_u32 v{vX0}, v{vL}, 2, 2
    v_lshrrev_b32 v{vX1}, 5, v{vL}
    v_lshl_add_u32 v{vX2}, v{vX1}, 3, v{vX0}
    v_lshlrev_b32 v{vWA}, 8, v{vX2}
    v_bfe_u32 v{vX2}, v{vL}, 4, 1
    v_bfe_u32 v{vX3}, v{vL}, 1, 1
    v_lshl_add_u32 v{vX2}, v{vX2}, 1, v{vX3}
    s_lshl_b32 s{sT0}, s{sWAVE}, 2
    v_add_u32 v{vX2}, s{sT0}, v{vX2}
    v_lshlrev_b32 v{vX0}, 2, v{vX0}
    v_xor_b32 v{vX2}, v{vX2}, v{vX0}
    v_lshl_add_u32 v{vWA}, v{vX2}, 4, v{vWA}
    v_and_b32 v{vX2}, 1, v{vL}
    v_lshl_add_u32 v{vWA}, v{vX2}, 3, v{vWA}
    v_add_u32 v{vWA}, {WT}, v{vWA}
    v_and_b32 v{vX0}, 31, v{vL}
    v_and_b32 v{vX2}, 15, v{vL}
    v_xor_b32 v{vX2}, v{vX2}, v{vX1}
    v_lshlrev_b32 v{vX2}, 4, v{vX2}
    v_lshl_add_u32 v{vX2}, v{vX0}, 9, v{vX2}
    v_add_u32 v{vHA}, {HT}, v{vX2}
    """)
    for k in range(1, 8):
        a(f"v_xor_b32 v{vHA+k}, {32*k}, v{vHA}")
    a(f"""
    v_mul_u32_u24 v{vX0}, 272, v{vX0}
    s_lshl_b32 s{sT0}, s{sWAVE}, 6
    s_add_u32 s{sT0}, s{sT0}, {STG}
    v_lshl_add_u32 v{vX1}, v{vX1}, 3, s{sT0}
    v_add_u32 v{vSB}, v{vX0}, v{vX1}
    s_mov_b32 s46, {fbits(LOG2E_NEG)}
    s_waitcnt vmcnt(0)
    """)
    stamp(a, cfg, "k1", 1)
    a("s_barrier")
    stamp(a, cfg, "k1", 2)
    AC, FR = 68, 20

    def rd(t):
        b = FR + 16 * (t % 3)
        a(f"ds_read_b64_tr_b16 {v(b,2)}, v{vWA} offset:{4096*t}")
        a(f"ds_read_b64_tr_b16 {v(b+2,2)}, v{vWA} offset:{4096*t+1024}")
        for r in range(3):
            a(f"ds_read_b128 {v(b+4+4*r,4)}, v{vHA+(t&7)} offset:{16384*r+256*(t>>3)}")
    rd(0)
    rd(1)
    for t in range(16):
        a(f"s_waitcnt lgkmcnt({5 if t < 15 else 0})")
        b = FR + 16 * (t % 3)
        for r in range(3):
            a(f"v_mfma_f32_32x32x16_bf16 {v(AC+16*r,16)}, {v(b,4)}, {v(b+4+4*r,4)}, {'0' if t == 0 else v(AC+16*r,16)}")
            if r == 0 and t + 2 < 16:
                rd(t + 2)
    stamp(a, cfg, "k1", 3)
    a("s_nop 7\ns_nop 1")
    for r in range(3):
        if r == 2:
            a("s_mov_b32 exec_lo, 0xffff\ns_mov_b32 exec_hi, 0xffff")
        for k in range(8):
            a(f"v_pk_mul_f32 {v(AC+16*r+2*k,2)}, {v(AC+16*r+2*k,2)}, s[46:47] op_sel_hi:[1,0]")
        for k in range(8):
            a(f"v_cvt_pk_bf16_f32 v{FR+8*r+k}, v{AC+16*r+2*k}, v{AC+16*r+2*k+1}")
        for q in range(4):
            a(f"ds_write_b64 v{vSB}, {v(FR+8*r+2*q,2)} offset:{32*272*r+16*q}")
    a("s_mov_b64 exec, -1\ns_branch K1_join")
    a("K1_idle:\ns_waitcnt lgkmcnt(0)\ns_barrier\ns_barrier\ns_branch K1_join")

    vDST, vSRC, vEA = 2, 3, 4
    vPD, vPS = 10, 12
    vBK, vDL, vRK = 14, 15, 16
    vF = 36
    vC = 44
    a(f"""
    K1_sort:
    v_subrev_u32 v{vX0}, 256, v0
    v_cmp_gt_u32 vcc, 625, v{vX0}
    s_mul_i32 s{sT0}, s2, 625
    v_min_u32 v{vX0}, 624, v{vX0}
    v_add_u32 v{vX0}, s{sT0}, v{vX0}
    s_mov_b64 s[{sEDGE}:{sEDGE+1}], vcc
    v_lshlrev_b32 v{vX1}, 2, v{vX0}
    v_lshlrev_b32 v{vX2}, 3, v{vX0}
    s_mov_b32 s{sPOS+2}, 60000
    s_mov_b32 s{sPOS+3}, 0x20000
    s_lshl_b32 s{sTASK}, s2, 1
    s_add_u32 s{sTASK}, s{sTASK}, s{sWAVE}
    s_sub_u32 s{sTASK}, s{sTASK}, 4
    s_cmp_ge_u32 s{sWAVE}, 6
    s_cselect_b32 s{sTASK}, 1000, s{sTASK}
    v_mov_b32 v{vX3}, 1
    s_waitcnt lgkmcnt(0)
    global_load_dword v{vDST}, v{vX1}, s[12:13]
    global_load_dword v{vSRC}, v{vX1}, s[10:11]
    """)
    if cfg.get("touch", 0):
        a(f"""
        s_cmp_lg_u32 s{sWAVE}, 13
        s_cbranch_scc1 K1_notouch
        s_mul_i32 s{sT0}, s{sRT}, {80*512}
        s_add_u32 s{sT0}, s{sT0}, {WS_B}
        s_mul_i32 s{sT1}, s2, {REC_STRIDE}
        s_add_u32 s{sT1}, s{sT1}, {WS_REC}
        v_mov_b32 v60, {WS_OFF}
        v_writelane_b32 v60, s{sT0}, 0
        v_writelane_b32 v60, s{sT1}, 1
        s_add_u32 s{sT0}, s{sT0}, {80*512-4}
        s_add_u32 s{sT1}, s{sT1}, {REC_STRIDE-4}
        v_writelane_b32 v60, s{sT0}, 2
        v_writelane_b32 v60, s{sT1}, 3
        s_mov_b64 exec, 31
        global_load_dword v61, v60, s[20:21]
        s_mov_b64 exec, -1
        s_lshr_b32 s{sT0}, s2, 3
        s_lshl_b32 s{sT0}, s{sT0}, 11
        v_lshl_add_u32 v60, v{vL}, 5, s{sT0}
        v_min_u32 v60, 59996, v60
        global_load_dword v62, v60, s[6:7]
        K1_notouch:
        """)
    a(f"""
    s_barrier
    s_mov_b32 s{sPOS}, s6
    s_mov_b32 s{sPOS+1}, s7
    s_waitcnt vmcnt(0)
    """)
    a(f"""
    v_mul_u32_u24 v{vX0}, 6, v{vDST}
    v_mul_u32_u24 v{vX1}, 6, v{vSRC}
    v_mul_u32_u24 v{vBK}, {52429}, v{vDST}
    v_and_b32 v{vX0}, -4, v{vX0}
    v_and_b32 v{vX1}, -4, v{vX1}
    v_lshrrev_b32 v{vBK}, 21, v{vBK}
    v_mul_u32_u24 v{vDL}, 40, v{vBK}
    v_lshlrev_b32 v{vBK}, 2, v{vBK}
    s_mov_b64 exec, s[{sEDGE}:{sEDGE+1}]
    ds_add_rtn_u32 v{vRK}, v{vBK}, v{vX3}
    s_mov_b64 exec, -1
    buffer_load_dwordx2 v[{vPD}:{vPD+1}], v{vX0}, s[{sPOS}:{sPOS+3}], 0 offen
    buffer_load_dwordx2 v[{vPS}:{vPS+1}], v{vX1}, s[{sPOS}:{sPOS+3}], 0 offen
    global_load_dwordx2 v[{vEA}:{vEA+1}], v{vX2}, s[8:9]
    v_sub_u32 v{vDL}, v{vDST}, v{vDL}
    v_lshl_or_b32 v{vDL}, v{vSRC}, 16, v{vDL}
    s_cmp_ge_u32 s{sTASK}, 392
    s_cbranch_scc1 K1_notask
    """)
    a(f"""
    s_cmp_lt_u32 s{sTASK}, 128
    s_cselect_b32 s46, s14, s18
    s_cselect_b32 s47, s15, s19
    s_cmp_ge_u32 s{sTASK}, 256
    s_cselect_b32 s{sT0}, {256*512}, 0
    s_and_b32 s{sT1}, s{sTASK}, 15
    s_lshl_b32 s{sT1}, s{sT1}, 13
    s_add_u32 s{sT0}, s{sT0}, s{sT1}
    s_bfe_u32 s{sT1}, s{sTASK}, 0x30004
    s_lshl_b32 s{sT1}, s{sT1}, 6
    s_add_u32 s{sT0}, s{sT0}, s{sT1}
    v_lshrrev_b32 v{vX0}, 5, v{vL}
    v_and_b32 v{vX1}, 31, v{vL}
    v_lshlrev_b32 v{vX2}, 12, v{vX0}
    s_cmp_lt_u32 s{sTASK}, 384
    s_cbranch_scc1 K1_nokc
    v_lshlrev_b32 v{vX2}, 9, v{vX0}
    v_sub_u32 v{vX2}, 0, v{vX2}
    s_sub_u32 s{sT0}, s{sTASK}, 384
    s_lshl_b32 s{sT0}, s{sT0}, 6
    s_add_u32 s{sT0}, s{sT0}, {509*512}
    s_mov_b32 s46, s14
    s_mov_b32 s47, s15
    K1_nokc:
    v_lshl_add_u32 v{vX1}, v{vX1}, 1, v{vX2}
    v_add_u32 v{vX1}, s{sT0}, v{vX1}
    """)
    for j in range(8):
        a(f"global_load_ushort v{vF+j}, v{vX1}, s[46:47] offset:{512*j}")
    a(f"""
    K1_notask:
    v_lshlrev_b32 v{vX2}, 4, v{vL}
    s_waitcnt lgkmcnt(0)
    """)
    stamp(a, cfg, "k1", 1)
    a("s_barrier")
    stamp(a, cfg, "k1", 2)
    c0, sm, inc, o0 = vC, vC + 4, vC + 5, vC + 8
    a(f"""
    ds_read_b128 {v(c0,4)}, v{vX2} offset:{HIST}
    s_waitcnt lgkmcnt(0)
    v_add3_u32 v{sm}, v{c0}, v{c0+1}, v{c0+2}
    v_add_u32 v{sm}, v{sm}, v{c0+3}
    v_mov_b32 v{inc}, v{sm}
    """)
    scan(a, inc, "v_add_u32", 64)
    a(f"""
    v_sub_u32 v{o0}, v{inc}, v{sm}
    v_add_u32 v{o0+1}, v{o0}, v{c0}
    v_add_u32 v{o0+2}, v{o0+1}, v{c0+1}
    v_add_u32 v{o0+3}, v{o0+2}, v{c0+2}
    ds_write_b128 v{vX2}, {v(o0,4)} offset:{STARTS}
    ds_read_b32 v{vBK}, v{vBK} offset:{STARTS}
    v_and_b32 v{vX0}, 1, v{vDST}
    v_and_b32 v{vX1}, 1, v{vSRC}
    v_lshlrev_b32 v{vX0}, 4, v{vX0}
    v_lshlrev_b32 v{vX1}, 4, v{vX1}
    s_waitcnt vmcnt(0)
    """)
    stamp(a, cfg, "k1", 3)
    t0, t1, t2, t3, t4, t5 = range(20, 26)
    HI = "0xffff0000"
    a(f"""
    v_alignbit_b32 v{vPD}, v{vPD+1}, v{vPD}, v{vX0}
    v_alignbit_b32 v{vPS}, v{vPS+1}, v{vPS}, v{vX1}
    v_lshrrev_b32 v{vPD+1}, v{vX0}, v{vPD+1}
    v_lshrrev_b32 v{vPS+1}, v{vX1}, v{vPS+1}
    v_lshlrev_b32 v{t0}, 16, v{vPD}
    v_lshlrev_b32 v{t1}, 16, v{vPS}
    v_and_b32 v{t2}, {HI}, v{vPD}
    v_and_b32 v{t3}, {HI}, v{vPS}
    v_lshlrev_b32 v{t4}, 16, v{vPD+1}
    v_lshlrev_b32 v{t5}, 16, v{vPS+1}
    v_sub_f32 v{t0}, v{t0}, v{t1}
    v_sub_f32 v{t2}, v{t2}, v{t3}
    v_sub_f32 v{t4}, v{t4}, v{t5}
    v_cvt_pk_bf16_f32 v{t0}, v{t0}, v{t0}
    v_cvt_pk_bf16_f32 v{vPS}, v{t2}, v{t4}
    v_lshlrev_b32 v{t0}, 16, v{t0}
    v_lshlrev_b32 v{t2}, 16, v{vPS}
    v_and_b32 v{t4}, {HI}, v{vPS}
    v_mul_f32 v{t1}, v{t0}, v{t0}
    v_mul_f32 v{t2}, v{t2}, v{t2}
    v_mul_f32 v{t4}, v{t4}, v{t4}
    v_cvt_pk_bf16_f32 v{t1}, v{t1}, v{t2}
    v_cvt_pk_bf16_f32 v{t4}, v{t4}, v{t4}
    v_lshlrev_b32 v{t2}, 16, v{t1}
    v_and_b32 v{t1}, {HI}, v{t1}
    v_lshlrev_b32 v{t4}, 16, v{t4}
    v_add_f32 v{t1}, v{t1}, v{t2}
    v_add_f32 v{t1}, v{t1}, v{t4}
    v_cvt_pk_bf16_f32 v{vPD}, v{t1}, v{t0}
    s_waitcnt lgkmcnt(0)
    v_add_u32 v{vBK}, v{vBK}, v{vRK}
    v_mul_u32_u24 v{vBK}, 20, v{vBK}
    v_add_u32 v{vBK}, {REC}, v{vBK}
    s_mov_b64 exec, s[{sEDGE}:{sEDGE+1}]
    ds_write2_b32 v{vBK}, v{vEA}, v{vEA+1} offset0:0 offset1:1
    ds_write2_b32 v{vBK}, v{vPD}, v{vDL} offset0:2 offset1:3
    ds_write_b32 v{vBK}, v{vPS} offset:16
    s_mov_b64 exec, -1
    s_cmp_lg_u32 s{sWAVE}, 6
    s_cbranch_scc1 K1_nooff
    v_lshl_or_b32 v{o0}, v{c0}, 16, v{o0}
    v_lshl_or_b32 v{o0+1}, v{c0+1}, 16, v{o0+1}
    v_lshl_or_b32 v{o0+2}, v{c0+2}, 16, v{o0+2}
    v_lshl_or_b32 v{o0+3}, v{c0+3}, 16, v{o0+3}
    s_lshl_b32 s{sT0}, s2, 10
    s_add_u32 s{sT0}, s{sT0}, {WS_OFF}
    v_add_u32 v{vX1}, s{sT0}, v{vX2}
    global_store_dwordx4 v{vX1}, {v(o0,4)}, s[20:21] {st}
    K1_nooff:
    s_cmp_ge_u32 s{sTASK}, 392
    s_cbranch_scc1 K1_join
    s_cmp_ge_u32 s{sTASK}, 384
    s_cbranch_scc1 K1_kc
    v_lshl_or_b32 v{vF}, v{vF+1}, 16, v{vF}
    v_lshl_or_b32 v{vF+1}, v{vF+3}, 16, v{vF+2}
    v_lshl_or_b32 v{vF+2}, v{vF+5}, 16, v{vF+4}
    v_lshl_or_b32 v{vF+3}, v{vF+7}, 16, v{vF+6}
    s_lshl_b32 s{sT0}, s{sTASK}, 10
    s_add_u32 s{sT0}, s{sT0}, {WS_WF}
    v_add_u32 v{vX0}, s{sT0}, v{vX2}
    global_store_dwordx4 v{vX0}, {v(vF,4)}, s[20:21] {st}
    s_branch K1_join
    K1_kc:
    v_cmp_gt_u32 vcc, 32, v{vL}
    v_mov_b32 v{vX1}, {fbits(LOG2E_NEG)}
    v_lshlrev_b32 v{vF+4}, 16, v{vF+4}
    v_lshlrev_b32 v{vF+5}, 16, v{vF+5}
    v_cndmask_b32_e64 v{vX0}, 0, v{vX1}, vcc
    v_lshlrev_b32 v{vF+6}, 16, v{vF+6}
    v_lshlrev_b32 v{vF+7}, 16, v{vF+7}
    v_mul_f32 v{vF+4}, v{vX1}, v{vF+4}
    v_mul_f32 v{vF+5}, v{vX0}, v{vF+5}
    v_mul_f32 v{vF+6}, v{vX0}, v{vF+6}
    v_mul_f32 v{vF+7}, v{vX0}, v{vF+7}
    v_cvt_pk_bf16_f32 v{vF}, v{vF+4}, v{vF+5}
    v_cvt_pk_bf16_f32 v{vF+1}, v{vF+6}, v{vF+7}
    s_sub_u32 s{sT0}, s{sTASK}, 384
    s_lshl_b32 s{sT0}, s{sT0}, 9
    s_add_u32 s{sT0}, s{sT0}, {WS_KC}
    v_lshl_add_u32 v{vX0}, v{vL}, 3, s{sT0}
    global_store_dwordx2 v{vX0}, {v(vF,2)}, s[20:21] {st}
    """)
    a(f"""
    K1_join:
    v_lshlrev_b32 v5, 4, v0
    s_waitcnt lgkmcnt(0)
    """)
    stamp(a, cfg, "k1", 4)
    a("s_barrier")
    stamp(a, cfg, "k1", 5)
    a(f"""
    ds_read_b128 v[8:11], v{vOL} offset:{STG}
    ds_read_b128 v[12:15], v{vOL} offset:{STG+56*272}
    ds_read_b128 v[16:19], v5 offset:{REC-112*16}
    """)
    stores(8, 12, 16, True, "")
    stamp(a, cfg, "k1", 6, wait=True)
    stamp_flush(a, cfg, "k1", 20)
    a("K1_exit:\ns_endpgm")
    return dict(vgpr=120, sgpr=100 if cfg.get('stamps') else 64, lds=K1_LDS, threads=K1_THREADS, grid=256)
```

```python
from asmlib import Asm, v, s
from common import *

CNT, ZERO = 0, 768
HT = 2048
MT = HT + 21120 + 512
OPS = MT + 21120
NBLK = 27
RING = OPS + NBLK * 3072
K2_LDS = RING + 32768
SLOW_R = (NBLK - 5) * 32 // 8
assert OPS % 256 == 0 and RING % 256 == 0 and K2_LDS <= 163840 and SLOW_R <= 128


class Alloc:
    def __init__(self, first):
        self.n = first

    def __call__(self, k=1):
        if k > 1 and self.n & 1:
            self.n += 1
        r = self.n
        self.n += k
        return r


def gen_k2(a: Asm, cfg):
    ost = cfg.get("out_store", "")
    w2s = cfg.get("w2s", [4, 4, 4, 4, 0])
    w1s = cfg.get("w1s", [4, 4, 4, 4, 0])
    assert sum(w1s) == 16 and sum(w2s) == 16
    w1c = [sum(w1s[:i]) for i in range(6)]
    w2c = [sum(w2s[:i]) for i in range(6)]
    prio = cfg.get("prio", 1)
    ZF0 = cfg.get("zf0", 5)
    sWS, sH, sG4 = 24, 28, 32
    sB, sW, sT0, sT1 = 36, 37, 38, 39
    sT2, sM, sQ, sG, sP = 40, 42, 43, 44, 45
    sJ0, sR, sLast, sTw, sTmax, sFirst, sAdone, sOver, sSp, sRing, sWO, sCO = range(46, 58)
    sV0, sV1, sC4, sL = 58, 60, 62, 64
    sWX = 4
    sWC = 28
    al = Alloc(1)
    vL, vA, vSr, vR0, vR1, vMW, vHB, vHS, vOB, vOS, vW16, vCB, vCS = (al() for _ in range(13))
    vVal, vPre, vInc, vLst = (al() for _ in range(4))
    PP = [al() for _ in range(4)]
    GI = [[al(2), al(2)], [al(2), al(2)]]
    P = [al(16), al(16)]
    T = al(16)
    X = al(16)
    M, ACC, BF, FA, S, FB = al(8), al(16), al(8), al(4), al(8), al(4)
    AP, ILO, IHI, WX, CB, CS, WB = al(8), al(4), al(4), al(8), al(16), al(4), al(64)
    assert P[0] + 16 == P[1] and T + 16 == X and CB + 16 == CS and BF + 8 == FA and al.n <= 256, al.n
    HR, vPOS = BF, S
    WC, HCB, HCS = X + 4, X + 8, X + 12
    x0, x1, x2, x3, x4, x5, x6, x7 = range(X, X + 8)
    vOne = X + 15

    def zero_fill(part=None):
        if part in (None, 0):
            a(f"""
            v_mov_b64 {v(T,2)}, 0
            v_mov_b64 {v(T+2,2)}, 0
            v_lshlrev_b32 v{T+4}, 4, v0
            v_add_u32 v{T+5}, {OPS}, v{T+4}
            v_add_u32 v{T+6}, {OPS+65536}, v{T+4}
            v_lshlrev_b32 v{T+7}, 3, v0
            ds_write_b64 v{T+7}, {v(T,2)} offset:{MT}
            """)
            lab = a.uid("K2_nolow")
            a(f"s_cmp_ge_u32 s{sW}, 2\ns_cbranch_scc1 {lab}\nds_write_b128 v{T+4}, {v(T,4)}\n{lab}:")
        rr = range(11) if part is None else (range(ZF0) if part == 0 else range(ZF0, 11))
        for r in rr:
            a(f"ds_write_b128 v{T+5 if r < 8 else T+6}, {v(T,4)} offset:{8192*(r&7)}")

    def wload(mtx, lo, hi):
        for t in range(lo, hi):
            if t == lo or t % 4 == 0:
                a(f"s_add_u32 s{sSp}, s{sWO}, {mtx*131072 + (t//4)*4096}")
            a(f"buffer_load_dwordx4 {v(WB+4*t,4)}, v{vW16}, s[{sWS}:{sWS+3}], s{sSp} offen offset:{1024*(t%4)}")

    def w1load(i):
        if w1s[i]:
            lab = a.uid("K2_now1")
            a(f"s_cmp_lg_u32 s{sAdone}, 0\ns_cbranch_scc1 {lab}")
            wload(0, w1c[i], w1c[i + 1])
            a(f"{lab}:")

    def gemm40(accB, accS, w_is_a, fr, init0, waits=None):
        def rd(t):
            b = fr + 8 * (t % 4)
            a(f"ds_read_b128 {v(b,4)}, v{vHB} offset:{32*t}")
            a(f"ds_read_b128 {v(b+4,4)}, v{vHS} offset:{32*t}")
        for t in range(3):
            rd(t)
        for t in range(16):
            left = min(15, t + 2) - t
            b = fr + 8 * (t % 4)
            w = v(WB + 4 * t, 4)
            if waits and t in waits:
                a(f"s_waitcnt vmcnt({waits[t]}) lgkmcnt({2*left})")
            else:
                a(f"s_waitcnt lgkmcnt({2*left})")
            cb = "0" if init0 and t == 0 else v(accB, 16)
            cs = "0" if init0 and t == 0 else v(accS, 4)
            if w_is_a:
                a(f"v_mfma_f32_32x32x16_bf16 {v(accB,16)}, {w}, {v(b,4)}, {cb}")
                a(f"v_mfma_f32_16x16x32_bf16 {v(accS,4)}, {w}, {v(b+4,4)}, {cs}")
            else:
                a(f"v_mfma_f32_32x32x16_bf16 {v(accB,16)}, {v(b,4)}, {w}, {cb}")
                a(f"v_mfma_f32_16x16x32_bf16 {v(accS,4)}, {v(b+4,4)}, {w}, {cs}")
            if t + 3 < 16:
                rd(t + 3)

    def src_read(slot, blk):
        return [f"ds_read_u16 v{GI[slot][0]}, v{vSr} offset:{3072*blk}",
                f"ds_read_u16 v{GI[slot][1]}, v{vSr} offset:{3072*blk+256}"]

    def dma(slot):
        return [f"buffer_load_dwordx4 {v(GI[slot][i],2)}, s[{sG4}:{sG4+3}], 0 idxen offen offset:{2048*slot+1024*i} {cfg.get('g_flags','')} lds"
                for i in range(2)]

    def setprio(old, young):
        if prio:
            l1, l2 = a.uid("K2_py"), a.uid("K2_pd")
            if young is None:
                a(f"s_cmp_ge_u32 s{sW}, 4\ns_cbranch_scc1 {l1}\ns_setprio {old}\n{l1}:")
            else:
                a(f"s_setprio {old}\ns_cmp_lt_u32 s{sW}, 4\ns_cbranch_scc1 {l1}\ns_setprio {young}\n{l1}:")

    a.label(K2_NAME)
    a(f"""
    s_and_b32 s{sT0}, s2, 7
    s_lshr_b32 s{sT1}, s2, 3
    s_lshl_b32 s{sT0}, s{sT0}, 5
    s_add_u32 s{sB}, s{sT0}, s{sT1}
    s_cmp_ge_u32 s2, 256
    s_cbranch_scc1 K2_exit
    s_cmp_ge_u32 s{sB}, 250
    s_cbranch_scc1 K2_exit
    s_load_dwordx2 s[{sWS}:{sWS+1}], s[0:1], 80
    s_load_dwordx2 s[{sH}:{sH+1}], s[0:1], 0
    s_load_dwordx2 s[22:23], s[0:1], 48
    s_load_dwordx2 s[20:21], s[0:1], 64
    s_load_dwordx2 s[66:67], s[0:1], 8
    """)
    stamp(a, cfg, "k2", 0)
    a(f"""
    v_lshrrev_b32 v{x0}, 6, v0
    v_and_b32 v{vL}, 63, v0
    v_readfirstlane_b32 s{sW}, v{x0}
    s_mov_b32 s{sWS+2}, {WS_END}
    s_mov_b32 s{sWS+3}, 0x20000
    s_mov_b32 s{sH+2}, 5120000
    s_mov_b32 s{sH+3}, 0x20000
    s_lshl_b32 s{sT0}, s{sW}, 15
    s_lshl_b32 s{sT1}, s{sB}, 2
    s_add_u32 s{sT0}, s{sT0}, s{sT1}
    s_add_u32 s{sT0}, s{sT0}, {WS_OFF}
    v_lshl_add_u32 v{x4}, v{vL}, 10, s{sT0}
    v_mov_b32 v{vInc}, 0
    """)
    zero_fill(0)
    a(f"""
    s_mul_i32 s{sT1}, s{sB}, 20480
    s_lshl_b32 s{sT2}, s{sW}, 6
    s_waitcnt lgkmcnt(0)
    s_mov_b32 exec_hi, 0
    buffer_load_dword v{vInc}, v{x4}, s[{sWS}:{sWS+3}], 0 offen
    s_mov_b32 exec_hi, -1
    s_add_u32 s22, s22, s{sT2}
    s_addc_u32 s23, s23, 0
    s_load_dwordx16 s[{sWX}:{sWX+15}], s[22:23], 0
    """)
    if cfg.get("bar0", 1):
        a("s_barrier")
    a(f"""
    s_add_u32 s{sT0}, s{sT1}, 8192
    s_add_u32 s{sT2}, s{sT1}, 16384
    s_mov_b32 s{sSp}, {WS_KC}
    buffer_load_dwordx2 {v(FB+2,2)}, v{T+7}, s[{sWS}:{sWS+3}], s{sSp} offen
    buffer_load_dwordx4 {v(P[0],4)}, v{T+4}, s[{sH}:{sH+3}], s{sT1} offen
    buffer_load_dwordx4 {v(P[0]+4,4)}, v{T+4}, s[{sH}:{sH+3}], s{sT0} offen
    buffer_load_dwordx4 {v(P[0]+8,4)}, v{T+4}, s[{sH}:{sH+3}], s{sT2} offen
    """)
    zero_fill(1)
    a(f"""
    s_cmp_lg_u32 s{sW}, 2
    s_cbranch_scc1 K2_nopad
    v_min_u32 v{x0}, 39, v{vL}
    v_sub_u32 v{x1}, v{vL}, v{x0}
    v_mul_u32_u24 v{x0}, 528, v{x0}
    v_lshl_add_u32 v{x0}, v{x1}, 4, v{x0}
    ds_write_b128 v{x0}, {v(T,4)} offset:{HT+512}
    K2_nopad:
    s_mov_b32 s{sJ0}, 0
    s_mov_b32 s{sR}, 128
    s_mov_b32 s{sLast}, 1
    s_mov_b32 s{sFirst}, 1
    s_mov_b32 s{sAdone}, 0
    s_lshl_b32 s{sT0}, s{sW}, 5
    v_add_u32 v{x4}, s{sT0}, v{vL}
    v_mul_u32_u24 v{x4}, {REC_STRIDE}, v{x4}
    v_add_u32 v{x7}, {WS_REC}, v{x4}
    s_lshl_b32 s{sT0}, s{sW}, 9
    s_add_u32 s{sT0}, s{sT0}, {MT}
    v_mov_b32 v{vLst}, s{sT0}
    v_lshlrev_b32 v{vW16}, 4, v{vL}
    s_lshl_b32 s{sWO}, s{sW}, 14
    s_add_u32 s{sWO}, s{sWO}, {WS_WF}
    """)

    def lane_consts():
        a(f"""
        s_mov_b32 s{sC4}, 0x11111111
        s_mov_b32 s{sC4+1}, 0x11111111
        s_mov_b32 s{sL}, {fbits(LOG2E_NEG)}
        s_lshl_b32 s{sRing}, s{sW}, 12
        s_add_u32 s{sRing}, s{sRing}, {RING}
        s_mov_b32 m0, s{sRing}
        s_add_u32 s{sG4}, s{sWS}, {WS_B-3072}
        s_addc_u32 s{sG4+1}, s{sWS+1}, 0
        s_or_b32 s{sG4+1}, s{sG4+1}, 0x2000000
        s_mov_b32 s{sG4+2}, 10000
        s_mov_b32 s{sG4+3}, 0x20000
        v_lshrrev_b32 v{x0}, 4, v{vL}
        v_xor_b32 v{x0}, v{x0}, v{vL}
        v_and_b32 v{x0}, 3, v{x0}
        s_lshl_b32 s{sT2}, s{sW}, 6
        v_lshl_add_u32 v{GI[1][1]+1}, v{x0}, 4, s{sT2}
        v_add_u32 v{GI[1][0]+1}, 1024, v{GI[1][1]+1}
        v_add_u32 v{GI[0][1]+1}, 2048, v{GI[1][1]+1}
        v_add_u32 v{GI[0][0]+1}, 3072, v{GI[1][1]+1}
        v_and_b32 v{x0}, 31, v{vL}
        v_lshrrev_b32 v{x1}, 5, v{vL}
        v_bfe_u32 v{x2}, v{vL}, 2, 2
        v_xor_b32 v{x2}, v{x2}, v{x1}
        v_lshlrev_b32 v{x2}, 4, v{x2}
        v_lshl_add_u32 v{x2}, v{x0}, 6, v{x2}
        v_add_u32 v{vR0}, s{sRing}, v{x2}
        v_xor_b32 v{x2}, 32, v{x2}
        v_add_u32 v{vR1}, s{sRing}, v{x2}
        v_lshrrev_b32 v{x2}, 2, v{x0}
        v_mul_u32_u24 v{x2}, 528, v{x2}
        v_lshl_add_u32 v{x2}, v{x1}, 3, v{x2}
        s_add_u32 s{sT0}, s{sT2}, {MT}
        v_add_u32 v{vMW}, s{sT0}, v{x2}
        v_lshlrev_b32 v{x1}, 3, v{x1}
        v_sub_u32 v{x0}, v{x0}, v{x1}
        v_and_b32 v{x1}, 1, v{x0}
        v_lshlrev_b32 v{x1}, 4, v{x1}
        v_mov_b32 v{x2}, 0x3f80
        v_lshlrev_b32 v{x1}, v{x1}, v{x2}
        v_ashrrev_i32 v{x0}, 1, v{x0}
        """)
        for k in range(4):
            a(f"v_cmp_eq_u32 vcc, {k}, v{x0}\nv_cmp_eq_u32 s[68:69], {8+k}, v{x0}\ns_nop 0")
            a(f"v_cndmask_b32_e64 v{ILO+k}, 0, v{x1}, vcc\nv_cndmask_b32_e64 v{IHI+k}, 0, v{x1}, s[68:69]")
        node_addrs(a, vL, vHB, vHS, (x0, x1, x2, x3), None, HT, 528, ZERO, sT1)
        out_addrs(a, vL, vOB, vOS, (x0, x1, x2, x3), None, HT, 528, sT2, sT1)
    if cfg.get("consts_early", 0):
        lane_consts()
    a("s_waitcnt vmcnt(4)")
    stamp(a, cfg, "k2", 1)
    a(f"""
    v_and_b32 v{x0}, 0xffff, v{vInc}
    v_lshrrev_b32 v{vInc}, 16, v{vInc}
    v_mov_b32 v{vPre}, v{vInc}
    """)
    scan(a, vInc, "v_add_u32", 32)
    a(f"""
    v_sub_u32 v{vPre}, v{vInc}, v{vPre}
    v_readlane_b32 s{sTw}, v{vInc}, 31
    v_sub_u32 v{x0}, v{x0}, v{vPre}
    v_mad_i32_i24 v{vVal}, v{x0}, 20, v{x7}
    """)
    RA, RB = P[1], P[1] + 8
    a(f"""
    K2_expand:
    s_add_u32 s{sT0}, s{sJ0}, s{sR}
    v_cmp_lt_u32 vcc, v{vPre}, v{vInc}
    v_cmp_lt_u32 s[{sV0}:{sV0+1}], s{sJ0}, v{vInc}
    v_cmp_gt_u32 s[{sV1}:{sV1+1}], s{sT0}, v{vPre}
    v_subrev_u32 v{x0}, s{sJ0}, v{vPre}
    v_max_i32 v{x0}, 0, v{x0}
    v_lshl_add_u32 v{x0}, v{x0}, 2, v{vLst}
    v_lshl_add_u32 v{x1}, v{vL}, 2, v{vLst}
    s_and_b64 vcc, vcc, s[{sV0}:{sV0+1}]
    s_and_b64 exec, vcc, s[{sV1}:{sV1+1}]
    ds_write_b32 v{x0}, v{vVal}
    s_mov_b64 exec, -1
    ds_read2st64_b32 {v(x2,2)}, v{x1} offset0:0 offset1:1
    s_sub_i32 s{sT1}, s{sTw}, s{sJ0}
    s_max_i32 s{sT1}, s{sT1}, 0
    s_min_u32 s{sT1}, s{sT1}, s{sR}
    v_add_u32 v{x4}, 64, v{vL}
    v_cmp_gt_u32 s[{sV0}:{sV0+1}], s{sT1}, v{vL}
    v_cmp_gt_u32 s[{sV1}:{sV1+1}], s{sT1}, v{x4}
    v_add_u32 v{x4}, s{sJ0}, v{vL}
    v_mul_u32_u24 v{x4}, 20, v{x4}
    v_mov_b32 v{x5}, 0x7fffff00
    s_waitcnt lgkmcnt(0)
    """)
    scan2(a, x2, x3, "v_max_u32")
    a(f"""
    v_readlane_b32 s{sT0}, v{x2}, 63
    v_add_u32 v{x2}, v{x2}, v{x4}
    v_add_u32 v{x4}, {64*20}, v{x4}
    v_max_u32 v{x3}, s{sT0}, v{x3}
    v_add_u32 v{x3}, v{x3}, v{x4}
    v_cndmask_b32_e64 v{x2}, v{x5}, v{x2}, s[{sV0}:{sV0+1}]
    v_cndmask_b32_e64 v{x3}, v{x5}, v{x3}, s[{sV1}:{sV1+1}]
    buffer_load_dwordx4 {v(RA,4)}, v{x2}, s[{sWS}:{sWS+3}], 0 offen
    buffer_load_dwordx4 {v(RB,4)}, v{x3}, s[{sWS}:{sWS+3}], 0 offen
    buffer_load_dword v{RA+4}, v{x2}, s[{sWS}:{sWS+3}], 0 offen offset:16
    buffer_load_dword v{RB+4}, v{x3}, s[{sWS}:{sWS+3}], 0 offen offset:16
    s_cmp_eq_u32 s{sFirst}, 0
    s_cbranch_scc1 K2_again1
    """)
    stamp(a, cfg, "k2", 2)
    a(f"""
    v_lshrrev_b32 v{x0}, 5, v0
    v_and_b32 v{x1}, 31, v0
    v_mul_u32_u24 v{x0}, 528, v{x0}
    v_lshl_add_u32 v{x0}, v{x1}, 4, v{x0}
    s_waitcnt vmcnt(4)
    ds_write_b128 v{x0}, {v(P[0],4)} offset:{HT}
    ds_write_b128 v{x0}, {v(P[0]+4,4)} offset:{HT+8448}
    s_cmp_ge_u32 s{sW}, 4
    s_cbranch_scc1 K2_h2
    ds_write_b128 v{x0}, {v(P[0]+8,4)} offset:{HT+2*8448}
    K2_h2:
    """)
    if not cfg.get("consts_early", 0):
        lane_consts()
    for k in range(8):
        a(f"v_mov_b32 v{WX+k}, s{sWX + 4*(k>>1) + (k&1)}")
    a("s_mov_b32 exec_lo, 0")
    for k in range(8):
        a(f"v_mov_b32 v{WX+k}, s{sWX + 4*(k>>1) + 2 + (k&1)}")
    a(f"""
    s_mov_b32 exec_lo, -1
    s_add_u32 s{sWC}, s{sWS}, s{sWO}
    s_addc_u32 s{sWC+1}, s{sWS+1}, 0
    s_add_u32 s{sWC}, s{sWC}, 131072
    s_addc_u32 s{sWC+1}, s{sWC+1}, 0
    K2_back1:
    v_mov_b32 v{vOne}, 0x3f80
    v_mov_b32 v{x6}, 1
    v_mov_b32 v{x7}, s{sTw}
    v_mov_b32 v{x5}, {CNT+24}
    v_min_u32 v{x4}, 7, v{vL}
    v_lshlrev_b32 v{x4}, 2, v{x4}
    s_waitcnt lgkmcnt(0)
    s_barrier
    """)
    w1load(0)
    a(f"""
    s_mov_b64 exec, 1
    ds_max_u32 v{x5}, v{x7}
    s_mov_b64 exec, -1
    s_waitcnt vmcnt({2+w1s[0]})
    """)
    stamp(a, cfg, "k2", 3)
    for R, sv in ((RA, sV0), (RB, sV1)):
        a(f"""
        v_lshrrev_b32 v{R+5}, 1, v{R+3}
        v_and_b32 v{R+5}, 0x1c, v{R+5}
        s_mov_b64 exec, s[{sv}:{sv+1}]
        ds_add_rtn_u32 v{R+6}, v{R+5}, v{x6} offset:{CNT}
        s_mov_b64 exec, -1
        """)
    a(f"""
    v_lshlrev_b32 v{x6}, 1, v{vL}
    v_add_u32 v{x6}, 8, v{x6}
    v_cmp_gt_u32 vcc, 5, v{vL}
    s_waitcnt lgkmcnt(0)
    s_barrier
    ds_read_b32 v{x0}, v{x4} offset:{CNT}
    """)
    w1load(1)
    for R in (RA, RB):
        a(f"""
        v_lshrrev_b32 v{x1}, 5, v{R+6}
        v_mul_u32_u24 v{x1}, 3072, v{x1}
        v_and_b32 v{x2}, 7, v{R+3}
        v_lshl_add_u32 v{R+7}, v{x2}, 6, v{x1}
        v_and_b32 v{x2}, 16, v{R+6}
        v_lshl_add_u32 v{R+7}, v{x2}, 6, v{R+7}
        v_and_b32 v{x2}, 4, v{R+6}
        v_lshl_add_u32 v{R+7}, v{x2}, 7, v{R+7}
        v_and_b32 v{x2}, 3, v{R+6}
        v_lshl_add_u32 v{R+7}, v{x2}, 1, v{R+7}
        v_and_or_b32 v{R+7}, v{R+6}, 8, v{R+7}
        v_and_b32 v{x2}, 31, v{R+6}
        v_lshl_add_u32 v{R+6}, v{x2}, 4, v{x1}
        """)
    a(f"""
    s_waitcnt lgkmcnt(0)
    v_readlane_b32 s{sT1}, v{x0}, 6
    v_max_u32 v{x1}, 1, v{x0}
    v_add_u32 v{x2}, -1, v{x1}
    v_lshrrev_b32 v{x1}, 5, v{x2}
    v_add_u32 v{x1}, 1, v{x1}
    v_bfe_u32 v{x2}, v{x2}, 3, 2
    v_lshl_or_b32 v{x2}, v{x2}, v{x6}, v{x1}
    v_cndmask_b32_e64 v{x2}, 0, v{x2}, vcc
    """)
    for sh in (1, 2, 4):
        a(f"s_nop 1\nv_add_u32_dpp v{x2}, v{x2}, v{x2} row_shr:{sh} row_mask:0xf bank_mask:0xf bound_ctrl:1")
    a(f"""
    s_nop 0
    v_readlane_b32 s{sQ}, v{x2}, 4
    v_and_b32 v{x2}, 0xff, v{x2}
    v_sub_u32 v{x3}, v{x2}, v{x1}
    v_mul_u32_u24 v{x3}, 3072, v{x3}
    v_add_u32 v{x3}, {OPS}, v{x3}
    ds_bpermute_b32 v{RA+5}, v{RA+5}, v{x3}
    ds_bpermute_b32 v{RB+5}, v{RB+5}, v{x3}
    v_sub_u32 v{x2}, 32, v{x2}
    v_lshlrev_b32 v{x2}, v{x2}, 1
    v_cndmask_b32_e64 v{x2}, 0, v{x2}, vcc
    s_and_b32 s{sT0}, s{sQ}, 0xff
    s_lshr_b32 s{sQ}, s{sQ}, 8
    """)
    for sh in (1, 2, 4):
        a(f"v_add_u32_dpp v{x2}, v{x2}, v{x2} row_shr:{sh} row_mask:0xf bank_mask:0xf bound_ctrl:1\ns_nop 1")
    a(f"""
    v_readlane_b32 s{sM}, v{x2}, 4
    s_cmp_gt_u32 s{sT0}, {NBLK}
    s_cselect_b32 s{sOver}, 1, 0
    s_cmp_eq_u32 s{sFirst}, 0
    s_cbranch_scc1 K2_notfirst
    s_mov_b32 s{sTmax}, s{sT1}
    s_cmp_gt_u32 s{sT1}, 128
    s_cselect_b32 s{sOver}, 1, s{sOver}
    K2_notfirst:
    s_mov_b32 s{sFirst}, 0
    """)
    w1load(2)
    a(f"""
    s_cmp_lg_u32 s{sOver}, 0
    s_cbranch_scc1 K2_over1
    s_waitcnt vmcnt({w1c[3]}) lgkmcnt(0)
    """)
    for R, sv in ((RA, sV0), (RB, sV1)):
        a(f"""
        v_bfe_u32 v{x0}, v{R+3}, 2, 1
        v_and_b32 v{x1}, 3, v{R+3}
        v_add_u32 v{R+6}, v{R+6}, v{R+5}
        v_add_u32 v{R+7}, v{R+7}, v{R+5}
        v_lshl_add_u32 v{x0}, v{x0}, 9, v{R+6}
        v_lshl_add_u32 v{x0}, v{x1}, 1, v{x0}
        s_mov_b64 exec, s[{sv}:{sv+1}]
        ds_write_b64 v{R+6}, {v(R+2,2)} offset:520
        ds_write_b64 v{R+6}, {v(R,2)} offset:8
        ds_write_b16 v{x0}, v{vOne}
        ds_write_b16 v{R+7}, v{vOne} offset:1024
        ds_write_b16_d16_hi v{R+7}, v{R+2} offset:1040
        ds_write_b16 v{R+7}, v{R+4} offset:1056
        ds_write_b16_d16_hi v{R+7}, v{R+4} offset:1072
        s_mov_b64 exec, -1
        """)
    a(f"""
    v_add_u32 v{vA}, {OPS}, v{vW16}
    v_lshrrev_b32 v{x0}, 2, v{vL}
    v_lshlrev_b32 v{x0}, 4, v{x0}
    v_add_u32 v{vSr}, {OPS+512+14}, v{x0}
    """)
    w1load(3)
    a("s_waitcnt lgkmcnt(0)\ns_barrier")
    stamp(a, cfg, "k2", 4)
    if cfg.get("x_bench"):
        a(f"s_mov_b32 s{sM}, {hex(0x1f << (32-27))}\ns_mov_b32 s{sQ}, 0x3ff")
    a("\n".join(src_read(0, 0) + src_read(1, 1)))
    a("s_waitcnt lgkmcnt(2)")
    a("\n".join(dma(0)))
    a("s_waitcnt lgkmcnt(0)")
    a("\n".join(dma(1)))
    a(f"""
    K2_back2:
    s_cmp_lg_u32 s{sAdone}, 0
    s_cbranch_scc1 K2_adone
    """)
    wload(0, w1c[4], 16)
    stamp(a, cfg, "k2", 5)
    waits = {t: (19 - t if t < w1c[4] else 15 - t) for t in range(16)}
    gemm40(P[0], ACC, False, T, True, waits=waits)
    a(f"s_mov_b32 s{sAdone}, 1")
    for k in range(10):
        a(f"v_mov_b64 {v(CB+2*k,2)}, 0")
    for k in range(8):
        a(f"v_pk_mul_f32 {v(P[0]+2*k,2)}, {v(P[0]+2*k,2)}, s[{sL}:{sL+1}] op_sel_hi:[1,0]")
    for k in range(2):
        a(f"v_pk_mul_f32 {v(ACC+2*k,2)}, {v(ACC+2*k,2)}, s[{sL}:{sL+1}] op_sel_hi:[1,0]")
    for k in range(8):
        a(f"v_cvt_pk_bf16_f32 v{FB+k if k < 2 else AP+k-2}, v{P[0]+2*k}, v{P[0]+2*k+1}")
    for k in range(2):
        a(f"v_cvt_pk_bf16_f32 v{AP+6+k}, v{ACC+2*k}, v{ACC+2*k+1}")
    a(f"""
    K2_adone:
    s_cmp_lg_u32 s{sOver}, 0
    s_cbranch_scc1 K2_slowstart
    """)
    for k in range(4):
        a(f"v_mov_b64 {v(M+2*k,2)}, 0")
    for k in range(8):
        a(f"v_mov_b64 {v(ACC+2*k,2)}, 0")
    a(f"""
    s_mov_b32 s{sG}, 0
    s_mov_b32 s{sP}, 0
    s_mov_b32 s{sCO}, 0
    s_lshl_b32 s{sWC+2}, s{sLast}, 14
    v_mov_b32 v{vCB}, v{vHB}
    v_mov_b32 v{vCS}, v{vHS}
    s_cmp_lg_u32 s{sJ0}, 0
    s_cbranch_scc1 K2_reload0
    K2_back3:
    """)
    stamp(a, cfg, "k2", 6)

    def frag_reads(slot):
        return [f"ds_read_b128 {v(BF,4)}, v{vR0} offset:{2048*slot}",
                f"ds_read_b128 {v(BF+4,4)}, v{vR1} offset:{2048*slot}"]

    def pre_mfma(q):
        Q = v(P[q], 16)
        return [f"v_mfma_f32_32x32x16_bf16 {Q}, {v(FA,4)}, {v(FB,4)}, 0",
                f"v_mfma_f32_32x32x16_bf16 {Q}, {v(BF,4)}, {v(ILO,4)}, {Q}",
                f"v_mfma_f32_32x32x16_bf16 {Q}, {v(BF+4,4)}, {v(IHI,4)}, {Q}"]

    agg = [f"v_mfma_f32_32x32x16_bf16 {v(ACC,16)}, {v(M,4)}, {v(S,4)}, {v(ACC,16)}",
           f"v_mfma_f32_32x32x16_bf16 {v(ACC,16)}, {v(M+4,4)}, {v(S+4,4)}, {v(ACC,16)}"]
    cm = [f"v_mfma_f32_32x32x16_bf16 {v(CB,16)}, {v(WC,4)}, {v(HCB,4)}, {v(CB,16)}",
          f"v_mfma_f32_16x16x32_bf16 {v(CS,4)}, {v(WC,4)}, {v(HCS,4)}, {v(CS,4)}"]

    def c_load(k):
        return [f"buffer_load_dwordx4 {v(WC,4)}, v{vW16}, s[{sWC}:{sWC+3}], s{sCO} offen offset:{1024*k}"]

    def c_read(k):
        return [f"ds_read_b128 {v(HCB,4)}, v{vCB} offset:{32*k}", f"ds_read_b128 {v(HCS,4)}, v{vCS} offset:{32*k}"]

    a("s_waitcnt vmcnt(2)")
    a("\n".join(frag_reads(0) + src_read(0, 2) + [f"ds_read_b128 {v(FA,4)}, v{vA}"] + c_read(0) + c_load(0)
                + ["s_waitcnt lgkmcnt(0)"] + dma(0) + pre_mfma(0)))
    a(f"s_cmp_eq_u32 s{sLast}, 0\ns_cbranch_scc1 K2_nextw")
    wload(2, 0, w2c[1])
    npw = 0
    if cfg.get("prewrite_out", 0):
        npw = 2
        a(f"""
        s_mul_i32 s{sT1}, s{sB}, 20480
        v_lshl_add_u32 v{x0}, v0, 4, s{sT1}
        v_add_u32 v{x1}, 8192, v{x0}
        v_add_u32 v{x2}, 16384, v{x0}
        global_store_dwordx4 v{x0}, {v(M,4)}, s[20:21] {cfg.get('prewrite_out')}
        global_store_dwordx4 v{x1}, {v(M,4)}, s[20:21] {cfg.get('prewrite_out')}
        s_cmp_ge_u32 s{sW}, 4
        s_cbranch_scc1 K2_nopw
        global_store_dwordx4 v{x2}, {v(M,4)}, s[20:21] {cfg.get('prewrite_out')}
        K2_nopw:
        """)
    if prio:
        a(f"s_setprio 1")
    a(f"s_waitcnt vmcnt({2 + w2s[0] + npw})")
    stamp(a, cfg, "k2", 7)
    a("s_branch K2_next")

    def body(p, nq, last):
        n = 4 * nq
        Pp = P[p]
        E = [f"v_exp_f32 v{T+i}, v{Pp+i}" for i in range(n)]
        A = [f"v_pk_add_f32 {v(T+i,2)}, {v(T+i,2)}, 1.0 op_sel_hi:[1,0]" for i in range(0, n, 2)]
        Rr = [f"v_rcp_f32 v{T+i}, v{T+i}" for i in range(n)]
        U = [f"v_pk_mul_f32 {v(T+i,2)}, {v(T+i,2)}, {v(Pp+i,2)}" for i in range(0, n, 2)]
        C = [f"v_cvt_pk_bf16_f32 v{M+i//2}, v{T+i}, v{T+i+1}" for i in range(0, n, 2)]
        fa = f"ds_read_b128 {v(FA,4)}, v{vA} offset:{3072*(p+1)}"
        sread = [f"ds_read_b128 {v(S,4)}, v{vA} offset:{3072*p+1024}", f"ds_read_b128 {v(S+4,4)}, v{vA} offset:{3072*p+2048}"]
        if nq <= 2:
            sread = sread[:1]
        head = frag_reads(1 - p) + src_read(1 - p, p + 3)
        dm = c_load(p + 1) + [f"s_waitcnt lgkmcnt({1+len(sread)})"] + dma(1 - p) + c_read(p + 1)
        k0, k1, k2 = (3, 6, 10) if nq >= 3 else ((2, 4, 6) if nq == 2 else (1, 2, 4))
        seq = head + E[:k0] + [cm[0], fa] + sread + E[k0:k1] + [cm[1]] + E[k1:k2] + dm + E[k2:] + A
        if last:
            seq += [f"v_mov_b64 {v(x0,2)}, {v(FB,2)}", f"v_mov_b64 {v(FB,2)}, {v(AP,2)}"]
            seq += [f"v_mov_b64 {v(AP+2*k,2)}, {v(AP+2*k+2,2)}" for k in range(3)]
            seq += [f"v_mov_b64 {v(AP+6,2)}, {v(x0,2)}"]
        pm = pre_mfma(1 - p)
        seq += ["s_waitcnt lgkmcnt(0)"]
        if nq == 1:
            seq += [pm[0]] + Rr[:2] + [pm[1]] + Rr[2:4] + [pm[2]]
        else:
            seq += [pm[0]] + Rr[:3] + [pm[1]] + Rr[3:6] + [pm[2]] + Rr[6:]
        adv = []
        if p == 1:
            adv = [f"v_add_u32 v{vA}, 6144, v{vA}", f"v_add_u32 v{vSr}, 6144, v{vSr}"]
            seq += [f"v_add_u32 v{vCB}, 64, v{vCB}", f"v_add_u32 v{vCS}, 64, v{vCS}", f"s_add_u32 s{sCO}, s{sCO}, 2048"]
        if nq == 4:
            seq += U[:4] + C[:4] + U[4:] + [agg[0]] + C[4:]
            seq += (adv or ["s_nop 0"])
            if not last:
                seq += [f"s_add_u32 s{sM}, s{sM}, s{sM}"]
            elif p == 0:
                seq += ["s_nop 0"]
            seq += [agg[1]]
        elif nq == 3:
            seq += U + C + [agg[0]] + (adv or ["s_nop 1"]) + [agg[1]]
        else:
            seq += U + C + (adv or ["s_nop 1"]) + [agg[0]]
        a("\n".join(seq))

    a(".p2align 3")
    a("K2_g0w:\ns_waitcnt vmcnt(2)\nK2_g0:")
    body(0, 4, False)
    a("s_cbranch_scc1 K2_l1w\nK2_g1w:\ns_waitcnt vmcnt(2)\nK2_g1:")
    body(1, 4, False)
    a("s_cbranch_scc0 K2_g0w")
    for p in (0, 1):
        a(f"K2_l{p}w:\ns_waitcnt vmcnt(2)\nK2_l{p}:")
        if prio == 1:
            setprio(0, None)
        a(f"""
        s_mov_b32 s{sP}, {1-p}
        s_bitcmp0_b32 s{sQ}, 1
        s_cbranch_scc1 K2_l{p}_lo
        s_bitcmp0_b32 s{sQ}, 0
        s_cbranch_scc1 K2_l{p}_3
        """)
        body(p, 4, True)
        a(f"s_branch K2_flush\nK2_l{p}_3:")
        body(p, 3, True)
        a(f"s_branch K2_flush\nK2_l{p}_lo:\ns_bitcmp0_b32 s{sQ}, 0\ns_cbranch_scc1 K2_l{p}_1")
        body(p, 2, True)
        a(f"s_branch K2_flush\nK2_l{p}_1:")
        body(p, 1, True)
        if p == 0:
            a("s_branch K2_flush")
    a("K2_flush:")
    if cfg.get("stamps"):
        a(f"s_cmp_lg_u32 s{sG}, {cfg.get('stamp_g', 0)}\ns_cbranch_scc1 K2_nost")
        stamp(a, cfg, "k2", 13)
        a("K2_nost:")
    a(f"""
    s_lshr_b32 s{sQ}, s{sQ}, 2
    s_cmp_eq_u32 s{sLast}, 0
    s_cbranch_scc1 K2_spill
    s_nop 8
    """)
    for k in range(8):
        a(f"v_cvt_pk_bf16_f32 v{T+k}, v{ACC+2*k}, v{ACC+2*k+1}")
    a(f"s_mov_b64 exec, s[{sC4}:{sC4+1}]")
    for q in range(4):
        a(f"ds_write_b64 v{vMW}, {v(T+2*q,2)} offset:{16*q}")
    a("s_mov_b64 exec, -1")
    for k in range(8):
        a(f"v_dot2_f32_bf16 v{x0}, v{T+k}, v{WX+k}, {'0' if k == 0 else v(x0)}")
    a(f"v_add_u32 v{vMW}, {8*528}, v{vMW}")
    for k in range(8):
        a(f"v_mov_b64 {v(ACC+2*k,2)}, 0")
    a(f"""
    s_cmp_lg_u32 s{sJ0}, 0
    s_cbranch_scc1 K2_reload
    K2_flushb:
    s_add_u32 s{sG}, s{sG}, 1
    """)
    for g in range(4):
        a(f"s_cmp_eq_u32 s{sG}, {g+1}\ns_cbranch_scc1 K2_x{g}")
    stamp(a, cfg, "k2", 8)
    a(f"""
    s_setprio 0
    s_lshl_b32 s{sT0}, s{sP}, 10
    s_add_u32 s{sCO}, s{sCO}, s{sT0}
    s_cmp_lt_u32 s{sCO}, 16384
    s_cbranch_scc1 K2_crest
    K2_cdone:
    """)
    for q in range(4):
        a(f"ds_read_b64 {v(HR+2*q,2)}, v{vOB} offset:{16*q}")
    a(f"""
    ds_read_b64 {v(HR+8,2)}, v{vOS}
    s_mul_i32 s{sT0}, s{sB}, 240
    v_mov_b32 v{x3}, v{x0}
    v_min_u32 v{x0}, 119, v0
    v_lshl_add_u32 v{x1}, v{x0}, 1, s{sT0}
    global_load_ushort v{vPOS}, v{x1}, s[66:67]
    v_cmp_ne_u32 vcc, {ZERO}, v{vHS}
    v_add_u32 v{vHB}, {MT-HT}, v{vHB}
    v_add_u32 v{x2}, {MT-HT}, v{vHS}
    v_cndmask_b32_e64 v{vHS}, v{vHS}, v{x2}, vcc
    v_lshl_add_u32 v{x2}, v{vL}, 2, s{sRing}
    """)
    for k in range(10):
        a(f"v_pk_mul_f32 {v(CB+2*k,2)}, {v(CB+2*k,2)}, s[{sL}:{sL+1}] op_sel_hi:[1,0]")
    a(f"""
    s_waitcnt vmcnt(1)
    ds_write2st64_b32 v{x2}, v{PP[0]}, v{PP[1]} offset0:0 offset1:1
    ds_write2st64_b32 v{x2}, v{PP[2]}, v{PP[3]} offset0:2 offset1:3
    ds_write_b32 v{x2}, v{x3} offset:1024
    s_waitcnt lgkmcnt(0)
    s_barrier
    """)
    stamp(a, cfg, "k2", 9)
    gemm40(CB, CS, True, P[0], False)
    a(f"""
    v_mul_u32_u24 v{x1}, 171, v{x0}
    v_lshrrev_b32 v{x1}, 9, v{x1}
    v_add3_u32 v{x1}, v{x0}, v{x1}, 1
    v_lshrrev_b32 v{x2}, 5, v{x1}
    v_lshlrev_b32 v{x1}, 2, v{x1}
    v_lshl_add_u32 v{x1}, v{x2}, 7, v{x1}
    v_add_u32 v{x1}, {RING}, v{x1}
    s_cmp_ge_u32 s{sW}, 2
    s_cbranch_scc1 K2_nopp
    v_add_u32 v{x2}, 128, v{x1}
    """)
    for k in range(4):
        a(f"ds_read2st64_b32 {v(ACC+4*k,2)}, v{x1} offset0:{32*k} offset1:{32*k+16}")
        a(f"ds_read2st64_b32 {v(ACC+4*k+2,2)}, v{x2} offset0:{32*k} offset1:{32*k+16}")
    a(f"""
    K2_nopp:
    s_mov_b32 s{sT2}, {fbits(LN2_NEG)}
    v_lshrrev_b32 v{x2}, 5, v0
    v_and_b32 v{x3}, 31, v0
    v_mul_u32_u24 v{x2}, 528, v{x2}
    v_lshl_add_u32 v{x2}, v{x3}, 4, v{x2}
    s_mul_i32 s{sT1}, s{sB}, 20480
    v_lshl_add_u32 v{x3}, v0, 4, s{sT1}
    """)
    stamp(a, cfg, "k2", 10)
    E0 = P[0]
    for i in range(20):
        a(f"v_exp_f32 v{E0+i}, v{CB+i}")
    for i in range(0, 20, 2):
        a(f"v_pk_add_f32 {v(E0+i,2)}, {v(E0+i,2)}, 1.0 op_sel_hi:[1,0]")
    for i in range(20):
        a(f"v_rcp_f32 v{E0+i}, v{E0+i}")
    for i in range(0, 20, 2):
        a(f"v_pk_mul_f32 {v(E0+i,2)}, {v(E0+i,2)}, {v(CB+i,2)}")
    for i in range(10):
        a(f"v_lshlrev_b32 v{CB+2*i}, 16, v{HR+i}\nv_and_b32 v{CB+2*i+1}, 0xffff0000, v{HR+i}")
    for i in range(0, 20, 2):
        a(f"v_pk_fma_f32 {v(E0+i,2)}, {v(E0+i,2)}, s[{sT2}:{sT2+1}], {v(CB+i,2)} op_sel_hi:[1,0,1]")
    for i in range(10):
        a(f"v_cvt_pk_bf16_f32 v{T+i}, v{E0+2*i}, v{E0+2*i+1}")
    for q in range(4):
        a(f"ds_write_b64 v{vOB}, {v(T+2*q,2)} offset:{16*q}")
    a(f"""
    ds_write_b64 v{vOS}, {v(T+8,2)}
    s_mul_i32 s{sT0}, s{sB}, 240
    s_add_u32 s{sT0}, s{sT0}, 5120000
    v_lshl_add_u32 v{x0}, v{x0}, 1, s{sT0}
    v_add_u32 v{x4}, 8192, v{x3}
    v_add_u32 v{x5}, 16384, v{x3}
    s_waitcnt vmcnt(0) lgkmcnt(0)
    s_barrier
    ds_read_b128 {v(P[0],4)}, v{x2} offset:{HT}
    ds_read_b128 {v(P[0]+4,4)}, v{x2} offset:{HT+8448}
    s_cmp_ge_u32 s{sW}, 4
    s_cbranch_scc1 K2_o2
    ds_read_b128 {v(P[0]+8,4)}, v{x2} offset:{HT+2*8448}
    s_cmp_ge_u32 s{sW}, 2
    s_cbranch_scc1 K2_o3
    """)
    for n in (8, 4, 2):
        for k in range(0, n, 2):
            a(f"v_pk_add_f32 {v(ACC+k,2)}, {v(ACC+k,2)}, {v(ACC+n+k,2)}")
    a(f"""
    v_lshlrev_b32 v{vPOS}, 16, v{vPOS}
    v_add_f32 v{x7}, v{ACC}, v{ACC+1}
    v_fma_f32 v{x7}, v{x7}, s{sT2}, v{vPOS}
    v_cvt_pk_bf16_f32 v{x7}, v{x7}, v{x7}
    v_cmp_gt_u32 vcc, 120, v0
    s_mov_b64 exec, vcc
    global_store_short v{x0}, v{x7}, s[20:21] {ost}
    s_mov_b64 exec, -1
    K2_o3:
    s_waitcnt lgkmcnt(0)
    global_store_dwordx4 v{x5}, {v(P[0]+8,4)}, s[20:21] {ost}
    K2_o2:
    s_waitcnt lgkmcnt(0)
    global_store_dwordx4 v{x3}, {v(P[0],4)}, s[20:21] {ost}
    global_store_dwordx4 v{x4}, {v(P[0]+4,4)}, s[20:21] {ost}
    """)
    stamp(a, cfg, "k2", 11)
    stamp(a, cfg, "k2", 12, wait=True)
    stamp_flush(a, cfg, "k2", sWS)
    a("K2_exit:\ns_endpgm")

    for g in range(4):
        a(f"K2_x{g}:\nv_mov_b32 v{PP[g]}, v{x0}")
        wload(2, w2c[g + 1], w2c[g + 2])
        a(f"s_waitcnt vmcnt({2+w2s[g+1]})")
        if g < 3:
            a("s_branch K2_next")
    a("K2_next:")
    if prio == 1:
        setprio(2, None)
    a(f"""
    s_add_u32 s{sM}, s{sM}, s{sM}
    s_cbranch_scc1 K2_nextl
    s_cmp_eq_u32 s{sP}, 0
    s_cbranch_scc1 K2_g0
    s_branch K2_g1
    K2_nextl:
    s_cmp_eq_u32 s{sP}, 0
    s_cbranch_scc1 K2_l0
    s_branch K2_l1
    """)
    a(f"""
    K2_crest:
    s_lshr_b32 s{sT0}, s{sCO}, 5
    v_add_u32 v{vCB}, s{sT0}, v{vHB}
    v_add_u32 v{vCS}, s{sT0}, v{vHS}
    s_waitcnt vmcnt(0) lgkmcnt(0)
    """)
    a("\n".join(c_load(0) + c_read(0) + ["s_waitcnt vmcnt(0) lgkmcnt(0)"] + cm))
    a(f"""
    s_add_u32 s{sCO}, s{sCO}, 1024
    s_cmp_lt_u32 s{sCO}, 16384
    s_cbranch_scc1 K2_crest
    s_nop 7
    s_branch K2_cdone
    """)

    def spill_addr(greg):
        a(f"""
        s_lshl_b32 s{sSp}, s2, 3
        s_add_u32 s{sSp}, s{sSp}, s{sW}
        s_mul_i32 s{sSp}, s{sSp}, 5
        s_add_u32 s{sSp}, s{sSp}, s{greg}
        s_lshl_b32 s{sSp}, s{sSp}, 12
        s_add_u32 s{sSp}, s{sSp}, {WS_SPILL}
        """)

    def spill_load():
        for k in range(4):
            a(f"buffer_load_dwordx4 {v(ACC+4*k,4)}, v{vW16}, s[{sWS}:{sWS+3}], s{sSp} offen offset:{1024*k} sc1")
        a("s_waitcnt vmcnt(0)")
    a(f"""
    K2_nextw:
    s_waitcnt vmcnt(0) lgkmcnt(0)
    s_nop 7
    s_branch K2_next
    K2_again1:
    s_waitcnt vmcnt(0)
    s_branch K2_back1
    K2_over1:
    """)
    wload(0, w1c[3], w1c[4])
    a(f"""
    s_waitcnt vmcnt(0) lgkmcnt(0)
    s_branch K2_back2
    K2_slowstart:
    s_mov_b32 s{sR}, {SLOW_R}
    s_branch K2_setlast
    K2_nextpass:
    s_add_u32 s{sJ0}, s{sJ0}, {SLOW_R}
    K2_setlast:
    s_add_u32 s{sT0}, s{sJ0}, {SLOW_R}
    s_cmp_ge_u32 s{sT0}, s{sTmax}
    s_cselect_b32 s{sLast}, 1, 0
    s_waitcnt vmcnt(0) lgkmcnt(0)
    s_barrier
    """)
    zero_fill()
    a("s_branch K2_expand")
    a("K2_spill:\ns_nop 4")
    spill_addr(sG)
    for k in range(4):
        a(f"buffer_store_dwordx4 {v(ACC+4*k,4)}, v{vW16}, s[{sWS}:{sWS+3}], s{sSp} offen offset:{1024*k} sc1")
    a("s_waitcnt vmcnt(0)")
    for k in range(8):
        a(f"v_mov_b64 {v(ACC+2*k,2)}, 0")
    a(f"""
    s_add_u32 s{sG}, s{sG}, 1
    s_cmp_ge_u32 s{sG}, 5
    s_cbranch_scc1 K2_nextpass
    s_cmp_eq_u32 s{sJ0}, 0
    s_cbranch_scc1 K2_nextw
    """)
    spill_addr(sG)
    spill_load()
    a(f"""
    s_branch K2_nextw
    K2_reload:
    s_add_u32 s{sT0}, s{sG}, 1
    s_cmp_ge_u32 s{sT0}, 5
    s_cbranch_scc1 K2_flushb
    """)
    spill_addr(sT0)
    spill_load()
    a(f"s_branch K2_flushb\nK2_reload0:")
    spill_addr(sG)
    spill_load()
    a("s_branch K2_back3")
    return dict(vgpr=((al.n + 7) // 8) * 8, sgpr=100 if cfg.get("stamps") else 72, lds=K2_LDS, threads=512, grid=256)
```

```python
import sys, json
from common import *
from asmlib import Asm
import build as B

def body(which, mult, nw1):
    a = Asm()
    a("s_cmp_lg_u32 s2, 0\ns_cbranch_scc1 DG_end\ns_load_dwordx2 s[4:5], s[0:1], 80\ns_waitcnt lgkmcnt(0)")
    for n, (k, idx, op) in enumerate((which[:3], which[3:])):
        off = WS_STAMP + (0 if k == 1 else 1 << 20) + 4 * idx
        acc = 4 + n
        first = True
        nw = nw1 if k == 1 else 8
        for blk in range(4):
            a(f"v_lshlrev_b32 v1, 10, v0\nv_add_u32 v1, {off + blk*65536}, v1")
            if k == 2:
                a(f"v_add_u32 v2, {64*blk}, v0\nv_and_b32 v3, 7, v2\nv_lshlrev_b32 v3, 5, v3\nv_lshrrev_b32 v2, 3, v2\nv_add_u32 v2, v2, v3\nv_cmp_gt_u32 vcc, 250, v2\nv_mov_b32 v2, {off}\ns_nop 1\nv_cndmask_b32_e64 v1, v2, v1, vcc")
            for w in range(nw):
                a(f"global_load_dword v2, v1, s[4:5] offset:{64*w}\ns_waitcnt vmcnt(0)")
                if first:
                    a(f"v_mov_b32 v{acc}, v2"); first = False
                else:
                    a(f"v_{op}_u32 v{acc}, v{acc}, v2")
        if op == "min":
            a(f"v_not_b32 v{acc}, v{acc}")
        scan(a, acc, "v_max_u32", 64)
        a(f"s_nop 1\nv_readlane_b32 s{6+n}, v{acc}, 63")
        if op == "min":
            a(f"s_nop 3\ns_not_b32 s{6+n}, s{6+n}")
    a(f"""s_nop 3
    s_sub_u32 s8, s7, s6
    s_min_u32 s8, s8, 10000
    s_mul_i32 s8, s8, {mult}
    s_memrealtime s[10:11]
    s_waitcnt lgkmcnt(0)
    s_add_u32 s8, s8, s10
    DG_wait:
    s_memrealtime s[10:11]
    s_waitcnt lgkmcnt(0)
    s_sub_u32 s9, s8, s10
    s_cmp_gt_i32 s9, 0
    s_cbranch_scc1 DG_wait
    DG_end:""")
    return a.text()

def make(out, cfg, sp, mult=40):
    cfg = dict(cfg)
    x, y = sp.split("-")
    ka, ia = map(int, x.split(".")); kb, ib = map(int, y.split("."))
    cfg.update(stamps="rt", extra_empty=1, stamp_only=[[f"k{ka}", ia], [f"k{kb}", ib]])
    cfg["extra_body"] = body((ka, ia, "min", kb, ib, "max"), mult, 14)
    open(out, "w").write(B.build(cfg))

if __name__ == "__main__":
    make(sys.argv[1], json.loads(sys.argv[2]), sys.argv[3])
```

```python
from asmlib import Asm, v, s
from common import *

HIST, STARTS, REC = 0, 1024, 2048
STG = REC + REC_STRIDE + 256
HT = STG + 80 * 272 + 256
WT = HT + 80 * 512
K1_LDS = WT + 65536
K1_THREADS = 896
assert HT % 512 == 0 and WT % 256 == 0 and K1_LDS <= 163840


def gen_k1(a: Asm, cfg):
    st = cfg.get("k1_store", "sc1")
    sWAVE, sRT, sHALF, sT0, sT1, sT2 = 36, 37, 38, 39, 42, 43
    sEDGE = 40
    sPOS = 24
    sTASK = 45
    vL = 1
    vX0, vX1, vX2, vX3 = 6, 7, 8, 9
    a.label(K1_NAME)
    a(f"""
    s_cmp_ge_u32 s2, 256
    s_cbranch_scc1 K1_exit
    s_load_dwordx16 s[4:19], s[0:1], 0
    s_load_dwordx2 s[20:21], s[0:1], 80
    """)
    stamp(a, cfg, "k1", 0)
    if cfg.get("cpf", 0):
        a(f"""
        s_getpc_b64 s[48:49]
        K1_pc:
        v_lshlrev_b32 v62, 7, v0
        v_cmp_gt_u32 vcc, (K2_crest-K1_pc)/128, v0
        s_and_saveexec_b64 s[50:51], vcc
        s_cbranch_execz K1_nopf
        global_load_dword v63, v62, s[48:49]
        K1_nopf:
        s_mov_b64 exec, s[50:51]
        """)
    a(f"""
    v_lshrrev_b32 v{vX0}, 6, v0
    v_and_b32 v{vL}, 63, v0
    v_readfirstlane_b32 s{sWAVE}, v{vX0}
    s_and_b32 s{sT0}, s2, 7
    s_lshr_b32 s{sT1}, s2, 3
    s_and_b32 s{sHALF}, s{sT1}, 1
    s_lshr_b32 s{sT1}, s{sT1}, 1
    s_lshl_b32 s{sT1}, s{sT1}, 3
    s_add_u32 s{sRT}, s{sT1}, s{sT0}
    s_cmp_ge_u32 s{sWAVE}, 4
    s_cbranch_scc1 K1_sort
    """)
    vWA, vHA, vSB = 2, 10, 3
    vGH, vGW = 4, 5
    late = cfg.get("k1_late", 0)
    a(f"""
    v_lshlrev_b32 v{vX1}, 2, v0
    v_mov_b32 v{vX2}, 0
    ds_write_b32 v{vX1}, v{vX2}
    s_cmp_ge_u32 s{sRT}, 125
    s_cbranch_scc1 K1_idle
    v_lshrrev_b32 v{vX0}, 4, v{vL}
    v_and_b32 v{vX1}, 15, v{vL}
    v_lshlrev_b32 v{vGW}, 2, v{vX0}
    v_xor_b32 v{vX1}, v{vX1}, v{vGW}
    v_lshlrev_b32 v{vX1}, 4, v{vX1}
    v_lshl_add_u32 v{vX1}, v{vX0}, 9, v{vX1}
    s_lshl_b32 s{sT0}, s{sWAVE}, 15
    s_lshl_b32 s{sT1}, s{sHALF}, 8
    s_add_u32 s{sT0}, s{sT0}, s{sT1}
    s_add_u32 s{sT0}, s{sT0}, {256*512}
    v_add_u32 v{vGW}, s{sT0}, v{vX1}
    v_lshrrev_b32 v{vX0}, 5, v{vL}
    v_and_b32 v{vX1}, 31, v{vL}
    s_lshl_b32 s{sT0}, s{sWAVE}, 1
    v_add_u32 v{vX2}, s{sT0}, v{vX0}
    v_xor_b32 v{vX3}, v{vX2}, v{vX1}
    s_mul_i32 s{sT1}, s{sRT}, 80
    v_add_u32 v{vX2}, s{sT1}, v{vX2}
    v_lshlrev_b32 v{vX2}, 9, v{vX2}
    v_lshl_add_u32 v{vGH}, v{vX3}, 4, v{vX2}
    v_xor_b32 v18, 128, v{vGH}
    v_add_u32 v18, 4096, v18
    s_lshl_b32 s{sT0}, s{sWAVE}, 10
    s_add_u32 s{sT0}, s{sT0}, {HT}
    s_lshl_b32 s{sT1}, s{sWAVE}, 14
    s_add_u32 s{sT1}, s{sT1}, {WT}
    s_waitcnt lgkmcnt(0)
    """)
    stamp(a, cfg, "k1", 7)
    a("s_barrier")
    stamp(a, cfg, "k1", 8)

    def hload(i):
        r = vGH if i % 2 == 0 else 18
        a(f"s_add_u32 m0, s{sT0}, {4096*i}")
        a(f"v_add_u32 v{r}, 8192, v{r}" if i >= 2 else "s_nop 0")
        a(f"global_load_lds_dwordx4 v{r}, s[4:5]")
    for i in range(16):
        a(f"s_add_u32 m0, s{sT1}, {1024*i}")
        a(f"v_add_u32 v{vGW}, 2048, v{vGW}" if i else "s_nop 0")
        a(f"global_load_lds_dwordx4 v{vGW}, s[14:15]")
        if i % 4 == 3:
            hload(i // 4)
    if not late:
        for i in range(4, 10):
            hload(i)
    stamp(a, cfg, "k1", 9)
    a(f"""
    v_bfe_u32 v{vX0}, v{vL}, 2, 2
    v_lshrrev_b32 v{vX1}, 5, v{vL}
    v_lshl_add_u32 v{vX2}, v{vX1}, 3, v{vX0}
    v_lshlrev_b32 v{vWA}, 8, v{vX2}
    v_bfe_u32 v{vX2}, v{vL}, 4, 1
    v_bfe_u32 v{vX3}, v{vL}, 1, 1
    v_lshl_add_u32 v{vX2}, v{vX2}, 1, v{vX3}
    s_lshl_b32 s{sT2}, s{sWAVE}, 2
    v_add_u32 v{vX2}, s{sT2}, v{vX2}
    v_lshlrev_b32 v{vX0}, 2, v{vX0}
    v_xor_b32 v{vX2}, v{vX2}, v{vX0}
    v_lshl_add_u32 v{vWA}, v{vX2}, 4, v{vWA}
    v_and_b32 v{vX2}, 1, v{vL}
    v_lshl_add_u32 v{vWA}, v{vX2}, 3, v{vWA}
    v_add_u32 v{vWA}, {WT}, v{vWA}
    v_and_b32 v{vX0}, 31, v{vL}
    v_and_b32 v{vX2}, 15, v{vL}
    v_xor_b32 v{vX2}, v{vX2}, v{vX1}
    v_lshlrev_b32 v{vX2}, 4, v{vX2}
    v_lshl_add_u32 v{vX2}, v{vX0}, 9, v{vX2}
    v_add_u32 v{vHA}, {HT}, v{vX2}
    """)
    for k in range(1, 8):
        a(f"v_xor_b32 v{vHA+k}, {32*k}, v{vHA}")
    a(f"""
    v_mul_u32_u24 v{vX0}, 272, v{vX0}
    s_lshl_b32 s{sT2}, s{sWAVE}, 6
    s_add_u32 s{sT2}, s{sT2}, {STG}
    v_lshl_add_u32 v{vX1}, v{vX1}, 3, s{sT2}
    v_add_u32 v{vSB}, v{vX0}, v{vX1}
    s_mov_b32 s46, {fbits(LOG2E_NEG)}
    s_waitcnt vmcnt({0 if late else 6})
    """)
    stamp(a, cfg, "k1", 1)
    a("s_barrier")
    stamp(a, cfg, "k1", 2)
    if late:
        for i in range(4, 10):
            hload(i)
    WF, HF, AC = 20, 84, 100
    for r in range(3):
        q = []

        def rd(t):
            if r == 0:
                a(f"ds_read_b64_tr_b16 {v(WF+4*t,2)}, v{vWA} offset:{4096*t}")
                a(f"ds_read_b64_tr_b16 {v(WF+4*t+2,2)}, v{vWA} offset:{4096*t+1024}")
            a(f"ds_read_b128 {v(HF+4*(t%4),4)}, v{vHA+(t&7)} offset:{16384*r+256*(t>>3)}")
        per = 3 if r == 0 else 1
        for t in range(3):
            rd(t)
        for t in range(16):
            a(f"s_waitcnt lgkmcnt({per*(min(15, t+2)-t)})")
            a(f"v_mfma_f32_32x32x16_bf16 {v(AC,16)}, {v(WF+4*t,4)}, {v(HF+4*(t%4),4)}, {'0' if t == 0 else v(AC,16)}")
            if t + 3 < 16:
                rd(t + 3)
        a("s_nop 7\ns_nop 3")
        if r == 2:
            a("s_mov_b32 exec_lo, 0xffff\ns_mov_b32 exec_hi, 0xffff")
        for k in range(8):
            a(f"v_pk_mul_f32 {v(AC+2*k,2)}, {v(AC+2*k,2)}, s[46:47] op_sel_hi:[1,0]")
        for k in range(8):
            a(f"v_cvt_pk_bf16_f32 v{HF+k}, v{AC+2*k}, v{AC+2*k+1}")
        for qq in range(4):
            a(f"ds_write_b64 v{vSB}, {v(HF+2*qq,2)} offset:{32*272*r+16*qq}")
        a(f"s_waitcnt vmcnt({2 if r == 0 else 0}) lgkmcnt(0)")
        stamp(a, cfg, "k1", 3 + r)
        a("s_barrier")
    a("s_mov_b64 exec, -1\ns_branch K1_done")
    a("K1_idle:\ns_waitcnt lgkmcnt(0)\ns_barrier\ns_barrier\ns_barrier\ns_barrier\ns_barrier\ns_branch K1_done")

    vDST, vSRC, vEA = 2, 3, 4
    vPD, vPS = 10, 12
    vBK, vDL, vRK = 14, 15, 16
    vF = 36
    vC = 44
    a(f"""
    K1_sort:
    v_subrev_u32 v{vX0}, 256, v0
    v_cmp_gt_u32 vcc, 625, v{vX0}
    s_mul_i32 s{sT0}, s2, 625
    v_min_u32 v{vX0}, 624, v{vX0}
    v_add_u32 v{vX0}, s{sT0}, v{vX0}
    s_mov_b64 s[{sEDGE}:{sEDGE+1}], vcc
    v_lshlrev_b32 v{vX1}, 2, v{vX0}
    v_lshlrev_b32 v{vX2}, 3, v{vX0}
    s_mov_b32 s{sPOS+2}, 60000
    s_mov_b32 s{sPOS+3}, 0x20000
    s_lshl_b32 s{sTASK}, s2, 1
    s_add_u32 s{sTASK}, s{sTASK}, s{sWAVE}
    s_sub_u32 s{sTASK}, s{sTASK}, 4
    s_cmp_ge_u32 s{sWAVE}, 6
    s_cselect_b32 s{sTASK}, 1000, s{sTASK}
    v_mov_b32 v{vX3}, 1
    """)
    if cfg.get("l2pf", 1):
        a(f"""
        s_lshr_b32 s{sT0}, s2, 3
        s_lshl_b32 s{sT1}, s{sT0}, 12
        s_add_u32 s{sT1}, s{sT1}, {256*512}
        v_lshl_add_u32 v60, v{vL}, 6, s{sT1}
        s_lshl_b32 s{sT1}, s{sT0}, 11
        v_lshl_add_u32 v61, v{vL}, 5, s{sT1}
        v_min_u32 v61, 59996, v61
        s_waitcnt lgkmcnt(0)
        s_cmp_lg_u32 s{sWAVE}, 4
        s_cbranch_scc1 K1_nopf2
        global_load_dword v60, v60, s[14:15]
        global_load_dword v61, v61, s[6:7]
        K1_nopf2:
        """)
    a(f"""
    s_waitcnt lgkmcnt(0)
    global_load_dword v{vDST}, v{vX1}, s[12:13]
    global_load_dword v{vSRC}, v{vX1}, s[10:11]
    global_load_dwordx2 v[{vEA}:{vEA+1}], v{vX2}, s[8:9]
    """)
    stamp(a, cfg, "k1", 7)
    if cfg.get("k1_prio", 0):
        a("s_setprio 1")
    if cfg.get("touch", 0):
        a(f"""
        s_cmp_lg_u32 s{sWAVE}, 13
        s_cbranch_scc1 K1_notouch
        s_mul_i32 s{sT0}, s{sRT}, {80*512}
        s_add_u32 s{sT0}, s{sT0}, {WS_B}
        s_mul_i32 s{sT1}, s2, {REC_STRIDE}
        s_add_u32 s{sT1}, s{sT1}, {WS_REC}
        v_mov_b32 v60, {WS_OFF}
        v_writelane_b32 v60, s{sT0}, 0
        v_writelane_b32 v60, s{sT1}, 1
        s_add_u32 s{sT0}, s{sT0}, {80*512-4}
        s_add_u32 s{sT1}, s{sT1}, {REC_STRIDE-4}
        v_writelane_b32 v60, s{sT0}, 2
        v_writelane_b32 v60, s{sT1}, 3
        s_mov_b64 exec, 31
        global_load_dword v61, v60, s[20:21]
        s_mov_b64 exec, -1
        s_lshr_b32 s{sT0}, s2, 3
        s_lshl_b32 s{sT0}, s{sT0}, 11
        v_lshl_add_u32 v60, v{vL}, 5, s{sT0}
        v_min_u32 v60, 59996, v60
        global_load_dword v62, v60, s[6:7]
        K1_notouch:
        """)
    a(f"""
    s_barrier
    s_mov_b32 s{sPOS}, s6
    s_mov_b32 s{sPOS+1}, s7
    s_waitcnt vmcnt({0 if cfg.get("touch") else 1})
    """)
    stamp(a, cfg, "k1", 8)
    a(f"""
    v_mul_u32_u24 v{vX0}, 6, v{vDST}
    v_mul_u32_u24 v{vX1}, 6, v{vSRC}
    v_mul_u32_u24 v{vBK}, {52429}, v{vDST}
    v_and_b32 v{vX0}, -4, v{vX0}
    v_and_b32 v{vX1}, -4, v{vX1}
    v_lshrrev_b32 v{vBK}, 21, v{vBK}
    v_mul_u32_u24 v{vDL}, 40, v{vBK}
    v_lshlrev_b32 v{vBK}, 2, v{vBK}
    s_mov_b64 exec, s[{sEDGE}:{sEDGE+1}]
    ds_add_rtn_u32 v{vRK}, v{vBK}, v{vX3}
    s_mov_b64 exec, -1
    buffer_load_dwordx2 v[{vPD}:{vPD+1}], v{vX0}, s[{sPOS}:{sPOS+3}], 0 offen
    buffer_load_dwordx2 v[{vPS}:{vPS+1}], v{vX1}, s[{sPOS}:{sPOS+3}], 0 offen
    """)
    stamp(a, cfg, "k1", 9)
    a(f"""
    v_sub_u32 v{vDL}, v{vDST}, v{vDL}
    v_lshl_or_b32 v{vDL}, v{vSRC}, 16, v{vDL}
    s_cmp_ge_u32 s{sTASK}, 392
    s_cbranch_scc1 K1_notask
    """)
    a(f"""
    s_cmp_lt_u32 s{sTASK}, 128
    s_cselect_b32 s46, s14, s18
    s_cselect_b32 s47, s15, s19
    s_cmp_ge_u32 s{sTASK}, 256
    s_cselect_b32 s{sT0}, {256*512}, 0
    s_and_b32 s{sT1}, s{sTASK}, 15
    s_lshl_b32 s{sT1}, s{sT1}, 13
    s_add_u32 s{sT0}, s{sT0}, s{sT1}
    s_bfe_u32 s{sT1}, s{sTASK}, 0x30004
    s_lshl_b32 s{sT1}, s{sT1}, 6
    s_add_u32 s{sT0}, s{sT0}, s{sT1}
    v_lshrrev_b32 v{vX0}, 5, v{vL}
    v_and_b32 v{vX1}, 31, v{vL}
    v_lshlrev_b32 v{vX2}, 12, v{vX0}
    s_cmp_lt_u32 s{sTASK}, 384
    s_cbranch_scc1 K1_nokc
    v_lshlrev_b32 v{vX2}, 9, v{vX0}
    v_sub_u32 v{vX2}, 0, v{vX2}
    s_sub_u32 s{sT0}, s{sTASK}, 384
    s_lshl_b32 s{sT0}, s{sT0}, 6
    s_add_u32 s{sT0}, s{sT0}, {509*512}
    s_mov_b32 s46, s14
    s_mov_b32 s47, s15
    K1_nokc:
    v_lshl_add_u32 v{vX1}, v{vX1}, 1, v{vX2}
    v_add_u32 v{vX1}, s{sT0}, v{vX1}
    """)
    for j in range(8):
        a(f"global_load_ushort v{vF+j}, v{vX1}, s[46:47] offset:{512*j}")
    a(f"""
    K1_notask:
    v_lshlrev_b32 v{vX2}, 4, v{vL}
    s_waitcnt lgkmcnt(0)
    """)
    stamp(a, cfg, "k1", 1)
    a("s_barrier")
    stamp(a, cfg, "k1", 2)
    c0, sm, inc, o0 = vC, vC + 4, vC + 5, vC + 8
    a(f"""
    ds_read_b128 {v(c0,4)}, v{vX2} offset:{HIST}
    s_waitcnt lgkmcnt(0)
    v_add3_u32 v{sm}, v{c0}, v{c0+1}, v{c0+2}
    v_add_u32 v{sm}, v{sm}, v{c0+3}
    v_mov_b32 v{inc}, v{sm}
    """)
    scan(a, inc, "v_add_u32", 64)
    a(f"""
    v_sub_u32 v{o0}, v{inc}, v{sm}
    v_add_u32 v{o0+1}, v{o0}, v{c0}
    v_add_u32 v{o0+2}, v{o0+1}, v{c0+1}
    v_add_u32 v{o0+3}, v{o0+2}, v{c0+2}
    ds_write_b128 v{vX2}, {v(o0,4)} offset:{STARTS}
    ds_read_b32 v{vBK}, v{vBK} offset:{STARTS}
    v_and_b32 v{vX0}, 1, v{vDST}
    v_and_b32 v{vX1}, 1, v{vSRC}
    v_lshlrev_b32 v{vX0}, 4, v{vX0}
    v_lshlrev_b32 v{vX1}, 4, v{vX1}
    s_waitcnt vmcnt(0)
    """)
    stamp(a, cfg, "k1", 3)
    t0, t1, t2, t3, t4, t5 = range(20, 26)
    HI = "0xffff0000"
    a(f"""
    v_alignbit_b32 v{vPD}, v{vPD+1}, v{vPD}, v{vX0}
    v_alignbit_b32 v{vPS}, v{vPS+1}, v{vPS}, v{vX1}
    v_lshrrev_b32 v{vPD+1}, v{vX0}, v{vPD+1}
    v_lshrrev_b32 v{vPS+1}, v{vX1}, v{vPS+1}
    v_lshlrev_b32 v{t0}, 16, v{vPD}
    v_lshlrev_b32 v{t1}, 16, v{vPS}
    v_and_b32 v{t2}, {HI}, v{vPD}
    v_and_b32 v{t3}, {HI}, v{vPS}
    v_lshlrev_b32 v{t4}, 16, v{vPD+1}
    v_lshlrev_b32 v{t5}, 16, v{vPS+1}
    v_sub_f32 v{t0}, v{t0}, v{t1}
    v_sub_f32 v{t2}, v{t2}, v{t3}
    v_sub_f32 v{t4}, v{t4}, v{t5}
    v_cvt_pk_bf16_f32 v{t0}, v{t0}, v{t0}
    v_cvt_pk_bf16_f32 v{vPS}, v{t2}, v{t4}
    v_lshlrev_b32 v{t0}, 16, v{t0}
    v_lshlrev_b32 v{t2}, 16, v{vPS}
    v_and_b32 v{t4}, {HI}, v{vPS}
    v_mul_f32 v{t1}, v{t0}, v{t0}
    v_mul_f32 v{t2}, v{t2}, v{t2}
    v_mul_f32 v{t4}, v{t4}, v{t4}
    v_cvt_pk_bf16_f32 v{t1}, v{t1}, v{t2}
    v_cvt_pk_bf16_f32 v{t4}, v{t4}, v{t4}
    v_lshlrev_b32 v{t2}, 16, v{t1}
    v_and_b32 v{t1}, {HI}, v{t1}
    v_lshlrev_b32 v{t4}, 16, v{t4}
    v_add_f32 v{t1}, v{t1}, v{t2}
    v_add_f32 v{t1}, v{t1}, v{t4}
    v_cvt_pk_bf16_f32 v{vPD}, v{t1}, v{t0}
    s_waitcnt lgkmcnt(0)
    v_add_u32 v{vBK}, v{vBK}, v{vRK}
    v_mul_u32_u24 v{vBK}, 20, v{vBK}
    v_add_u32 v{vBK}, {REC}, v{vBK}
    s_mov_b64 exec, s[{sEDGE}:{sEDGE+1}]
    ds_write2_b32 v{vBK}, v{vEA}, v{vEA+1} offset0:0 offset1:1
    ds_write2_b32 v{vBK}, v{vPD}, v{vDL} offset0:2 offset1:3
    ds_write_b32 v{vBK}, v{vPS} offset:16
    s_mov_b64 exec, -1
    s_cmp_lg_u32 s{sWAVE}, 6
    s_cbranch_scc1 K1_nooff
    v_lshl_or_b32 v{o0}, v{c0}, 16, v{o0}
    v_lshl_or_b32 v{o0+1}, v{c0+1}, 16, v{o0+1}
    v_lshl_or_b32 v{o0+2}, v{c0+2}, 16, v{o0+2}
    v_lshl_or_b32 v{o0+3}, v{c0+3}, 16, v{o0+3}
    s_lshl_b32 s{sT0}, s2, 10
    s_add_u32 s{sT0}, s{sT0}, {WS_OFF}
    v_add_u32 v{vX1}, s{sT0}, v{vX2}
    global_store_dwordx4 v{vX1}, {v(o0,4)}, s[20:21] {st}
    K1_nooff:
    s_cmp_ge_u32 s{sTASK}, 392
    s_cbranch_scc1 K1_join
    s_cmp_ge_u32 s{sTASK}, 384
    s_cbranch_scc1 K1_kc
    v_lshl_or_b32 v{vF}, v{vF+1}, 16, v{vF}
    v_lshl_or_b32 v{vF+1}, v{vF+3}, 16, v{vF+2}
    v_lshl_or_b32 v{vF+2}, v{vF+5}, 16, v{vF+4}
    v_lshl_or_b32 v{vF+3}, v{vF+7}, 16, v{vF+6}
    s_lshl_b32 s{sT0}, s{sTASK}, 10
    s_add_u32 s{sT0}, s{sT0}, {WS_WF}
    v_add_u32 v{vX0}, s{sT0}, v{vX2}
    global_store_dwordx4 v{vX0}, {v(vF,4)}, s[20:21] {st}
    s_branch K1_join
    K1_kc:
    v_cmp_gt_u32 vcc, 32, v{vL}
    v_mov_b32 v{vX1}, {fbits(LOG2E_NEG)}
    v_lshlrev_b32 v{vF+4}, 16, v{vF+4}
    v_lshlrev_b32 v{vF+5}, 16, v{vF+5}
    v_cndmask_b32_e64 v{vX0}, 0, v{vX1}, vcc
    v_lshlrev_b32 v{vF+6}, 16, v{vF+6}
    v_lshlrev_b32 v{vF+7}, 16, v{vF+7}
    v_mul_f32 v{vF+4}, v{vX1}, v{vF+4}
    v_mul_f32 v{vF+5}, v{vX0}, v{vF+5}
    v_mul_f32 v{vF+6}, v{vX0}, v{vF+6}
    v_mul_f32 v{vF+7}, v{vX0}, v{vF+7}
    v_cvt_pk_bf16_f32 v{vF}, v{vF+4}, v{vF+5}
    v_cvt_pk_bf16_f32 v{vF+1}, v{vF+6}, v{vF+7}
    s_sub_u32 s{sT0}, s{sTASK}, 384
    s_lshl_b32 s{sT0}, s{sT0}, 9
    s_add_u32 s{sT0}, s{sT0}, {WS_KC}
    v_lshl_add_u32 v{vX0}, v{vL}, 3, s{sT0}
    global_store_dwordx2 v{vX0}, {v(vF,2)}, s[20:21] {st}
    """)
    a(f"""
    K1_join:
    v_subrev_u32 v2, 256, v0
    v_lshlrev_b32 v5, 4, v2
    s_mul_i32 s{sT0}, s2, {REC_STRIDE}
    s_add_u32 s{sT0}, s{sT0}, {WS_REC}
    v_add_u32 v6, s{sT0}, v5
    v_add_u32 v7, 10240, v6
    v_cmp_gt_u32 vcc, 144, v2
    v_subrev_u32 v2, 384, v0
    v_lshrrev_b32 v3, 4, v2
    v_and_b32 v2, 15, v2
    v_mul_u32_u24 v4, 272, v3
    v_lshl_add_u32 v4, v2, 4, v4
    v_lshlrev_b32 v3, 9, v3
    v_lshl_add_u32 v3, v2, 4, v3
    s_mul_i32 s{sT0}, s{sRT}, {80*512}
    s_lshl_b32 s{sT1}, s{sHALF}, 8
    s_add_u32 s{sT0}, s{sT0}, s{sT1}
    s_add_u32 s{sT0}, s{sT0}, {WS_B}
    v_add_u32 v3, s{sT0}, v3
    s_cmp_ge_u32 s{sRT}, 125
    s_cselect_b32 s{sT2}, 99, 6
    s_waitcnt lgkmcnt(0)
    """)
    stamp(a, cfg, "k1", 4)
    a(f"""
    s_barrier
    ds_read_b128 v[8:11], v5 offset:{REC}
    s_cmp_ge_u32 s{sWAVE}, 7
    s_cbranch_scc1 K1_r1
    ds_read_b128 v[12:15], v5 offset:{REC+10240}
    s_mov_b64 exec, vcc
    s_waitcnt lgkmcnt(0)
    global_store_dwordx4 v7, v[12:15], s[20:21] {st}
    s_mov_b64 exec, -1
    K1_r1:
    s_cmp_lt_u32 s{sWAVE}, s{sT2}
    s_cbranch_scc1 K1_b0
    ds_read_b128 v[16:19], v4 offset:{STG}
    s_waitcnt lgkmcnt(0)
    global_store_dwordx4 v3, v[16:19], s[20:21] {st}
    v_add_u32 v3, 16384, v3
    K1_b0:
    s_waitcnt lgkmcnt(0)
    global_store_dwordx4 v6, v[8:11], s[20:21] {st}
    s_barrier
    s_cmp_lt_u32 s{sWAVE}, s{sT2}
    s_cbranch_scc1 K1_b1
    ds_read_b128 v[20:23], v4 offset:{STG+32*272}
    s_waitcnt lgkmcnt(0)
    global_store_dwordx4 v3, v[20:23], s[20:21] {st}
    v_add_u32 v3, 16384, v3
    K1_b1:
    s_barrier
    """)
    stamp(a, cfg, "k1", 5)
    a(f"""
    s_cmp_lt_u32 s{sWAVE}, s{sT2}
    s_cbranch_scc1 K1_done
    s_cmp_ge_u32 s{sWAVE}, 10
    s_cbranch_scc1 K1_done
    ds_read_b128 v[24:27], v4 offset:{STG+64*272}
    s_waitcnt lgkmcnt(0)
    global_store_dwordx4 v3, v[24:27], s[20:21] {st}
    K1_done:
    """)
    stamp(a, cfg, "k1", 6, wait=True)
    stamp_flush(a, cfg, "k1", 20)
    a("K1_exit:\ns_endpgm")
    return dict(vgpr=120, sgpr=100 if cfg.get('stamps') else 64, lds=K1_LDS, threads=K1_THREADS, grid=256)
```

```python
from asmlib import Asm, v, s
from common import *

CNT, ZERO = 0, 768
HT = 2048
MT = HT + 21120 + 512
OPS = MT + 21120
NBLK = 27
RING = OPS + NBLK * 3072
K2_LDS = RING + 32768
SLOW_R = (NBLK - 5) * 32 // 8
assert OPS % 256 == 0 and RING % 256 == 0 and K2_LDS <= 163840 and SLOW_R <= 128


class Alloc:
    def __init__(self, first):
        self.n = first

    def __call__(self, k=1):
        if k > 1 and self.n & 1:
            self.n += 1
        r = self.n
        self.n += k
        return r


def gen_k2(a: Asm, cfg):
    ost = cfg.get("out_store", "")
    w2s = cfg.get("w2s", [4, 4, 4, 4, 0])
    w1s = cfg.get("w1s", [4, 4, 4, 4, 0])
    assert sum(w1s) == 16 and sum(w2s) == 16
    w1c = [sum(w1s[:i]) for i in range(6)]
    w2c = [sum(w2s[:i]) for i in range(6)]
    prio = cfg.get("prio", 1)
    ZF0 = cfg.get("zf0", 5)
    sWS, sH, sG4 = 24, 28, 32
    sB, sW, sT0, sT1 = 36, 37, 38, 39
    sT2, sM, sQ, sG, sP = 40, 42, 43, 44, 45
    sJ0, sR, sLast, sTw, sTmax, sFirst, sAdone, sOver, sSp, sRing, sWO, sCO = range(46, 58)
    sV0, sV1, sC4, sL = 58, 60, 62, 64
    sWX = 4
    sWC = 28
    al = Alloc(1)
    vL, vA, vSr, vR0, vR1, vMW, vHB, vHS, vOB, vOS, vW16, vCB, vCS = (al() for _ in range(13))
    vVal, vPre, vInc, vLst = (al() for _ in range(4))
    PP = [al() for _ in range(4)]
    GI = [[al(2), al(2)], [al(2), al(2)]]
    P = [al(16), al(16)]
    T = al(16)
    X = al(16)
    M, ACC, BF, FA, S, FB = al(8), al(16), al(8), al(4), al(8), al(4)
    AP, ILO, IHI, WX, CB, CS, WB = al(8), al(4), al(4), al(8), al(16), al(4), al(64)
    assert P[0] + 16 == P[1] and T + 16 == X and CB + 16 == CS and BF + 8 == FA and al.n <= 256, al.n
    HR, vPOS = BF, S
    WC, HCB, HCS = X + 4, X + 8, X + 12
    x0, x1, x2, x3, x4, x5, x6, x7 = range(X, X + 8)
    vOne = X + 15

    def zero_fill(part=None):
        if part in (None, 0):
            a(f"""
            v_mov_b64 {v(T,2)}, 0
            v_mov_b64 {v(T+2,2)}, 0
            v_lshlrev_b32 v{T+4}, 4, v0
            v_add_u32 v{T+5}, {OPS}, v{T+4}
            v_add_u32 v{T+6}, {OPS+65536}, v{T+4}
            v_lshlrev_b32 v{T+7}, 3, v0
            ds_write_b64 v{T+7}, {v(T,2)} offset:{MT}
            """)
            lab = a.uid("K2_nolow")
            a(f"s_cmp_ge_u32 s{sW}, 2\ns_cbranch_scc1 {lab}\nds_write_b128 v{T+4}, {v(T,4)}\n{lab}:")
        rr = range(11) if part is None else (range(ZF0) if part == 0 else range(ZF0, 11))
        for r in rr:
            a(f"ds_write_b128 v{T+5 if r < 8 else T+6}, {v(T,4)} offset:{8192*(r&7)}")

    def wload(mtx, lo, hi):
        for t in range(lo, hi):
            if t == lo or t % 4 == 0:
                a(f"s_add_u32 s{sSp}, s{sWO}, {mtx*131072 + (t//4)*4096}")
            a(f"buffer_load_dwordx4 {v(WB+4*t,4)}, v{vW16}, s[{sWS}:{sWS+3}], s{sSp} offen offset:{1024*(t%4)}")

    def w1load(i):
        if w1s[i]:
            lab = a.uid("K2_now1")
            a(f"s_cmp_lg_u32 s{sAdone}, 0\ns_cbranch_scc1 {lab}")
            wload(0, w1c[i], w1c[i + 1])
            a(f"{lab}:")

    def gemm40(accB, accS, w_is_a, fr, init0, waits=None):
        def rd(t):
            b = fr + 8 * (t % 4)
            a(f"ds_read_b128 {v(b,4)}, v{vHB} offset:{32*t}")
            a(f"ds_read_b128 {v(b+4,4)}, v{vHS} offset:{32*t}")
        for t in range(3):
            rd(t)
        for t in range(16):
            left = min(15, t + 2) - t
            b = fr + 8 * (t % 4)
            w = v(WB + 4 * t, 4)
            if waits and t in waits:
                a(f"s_waitcnt vmcnt({waits[t]}) lgkmcnt({2*left})")
            else:
                a(f"s_waitcnt lgkmcnt({2*left})")
            cb = "0" if init0 and t == 0 else v(accB, 16)
            cs = "0" if init0 and t == 0 else v(accS, 4)
            if w_is_a:
                a(f"v_mfma_f32_32x32x16_bf16 {v(accB,16)}, {w}, {v(b,4)}, {cb}")
                a(f"v_mfma_f32_16x16x32_bf16 {v(accS,4)}, {w}, {v(b+4,4)}, {cs}")
            else:
                a(f"v_mfma_f32_32x32x16_bf16 {v(accB,16)}, {v(b,4)}, {w}, {cb}")
                a(f"v_mfma_f32_16x16x32_bf16 {v(accS,4)}, {v(b+4,4)}, {w}, {cs}")
            if t + 3 < 16:
                rd(t + 3)

    def src_read(slot, blk):
        return [f"ds_read_u16 v{GI[slot][0]}, v{vSr} offset:{3072*blk}",
                f"ds_read_u16 v{GI[slot][1]}, v{vSr} offset:{3072*blk+256}"]

    def dma(slot):
        return [f"buffer_load_dwordx4 {v(GI[slot][i],2)}, s[{sG4}:{sG4+3}], 0 idxen offen offset:{2048*slot+1024*i} {cfg.get('g_flags','')} lds"
                for i in range(2)]

    def setprio(old, young):
        if prio:
            l1, l2 = a.uid("K2_py"), a.uid("K2_pd")
            if young is None:
                a(f"s_cmp_ge_u32 s{sW}, 4\ns_cbranch_scc1 {l1}\ns_setprio {old}\n{l1}:")
            else:
                a(f"s_setprio {old}\ns_cmp_lt_u32 s{sW}, 4\ns_cbranch_scc1 {l1}\ns_setprio {young}\n{l1}:")

    a.label(K2_NAME)
    a(f"""
    s_and_b32 s{sT0}, s2, 7
    s_lshr_b32 s{sT1}, s2, 3
    s_lshl_b32 s{sT0}, s{sT0}, 5
    s_add_u32 s{sB}, s{sT0}, s{sT1}
    s_cmp_ge_u32 s2, 256
    s_cbranch_scc1 K2_exit
    s_cmp_ge_u32 s{sB}, 250
    s_cbranch_scc1 K2_exit
    s_load_dwordx2 s[{sWS}:{sWS+1}], s[0:1], 80
    s_load_dwordx2 s[{sH}:{sH+1}], s[0:1], 0
    s_load_dwordx2 s[22:23], s[0:1], 48
    s_load_dwordx2 s[20:21], s[0:1], 64
    s_load_dwordx2 s[66:67], s[0:1], 8
    """)
    stamp(a, cfg, "k2", 0)
    a(f"""
    v_lshrrev_b32 v{x0}, 6, v0
    v_and_b32 v{vL}, 63, v0
    v_readfirstlane_b32 s{sW}, v{x0}
    s_mov_b32 s{sWS+2}, {WS_END}
    s_mov_b32 s{sWS+3}, 0x20000
    s_mov_b32 s{sH+2}, 5120000
    s_mov_b32 s{sH+3}, 0x20000
    s_lshl_b32 s{sT0}, s{sW}, 15
    s_lshl_b32 s{sT1}, s{sB}, 2
    s_add_u32 s{sT0}, s{sT0}, s{sT1}
    s_add_u32 s{sT0}, s{sT0}, {WS_OFF}
    v_lshl_add_u32 v{x4}, v{vL}, 10, s{sT0}
    v_mov_b32 v{vInc}, 0
    """)
    zero_fill(0)
    a(f"""
    s_mul_i32 s{sT1}, s{sB}, 20480
    s_lshl_b32 s{sT2}, s{sW}, 6
    s_waitcnt lgkmcnt(0)
    s_mov_b32 exec_hi, 0
    buffer_load_dword v{vInc}, v{x4}, s[{sWS}:{sWS+3}], 0 offen
    s_mov_b32 exec_hi, -1
    s_add_u32 s22, s22, s{sT2}
    s_addc_u32 s23, s23, 0
    s_load_dwordx16 s[{sWX}:{sWX+15}], s[22:23], 0
    """)
    npf = 0
    if cfg.get("l2pf2", 1):
        npf = 1
        a(f"""
        s_lshr_b32 s{sT0}, s2, 3
        s_lshl_b32 s{sT0}, s{sT0}, 3
        s_add_u32 s{sT0}, s{sT0}, s{sW}
        s_lshl_b32 s{sT0}, s{sT0}, 9
        s_add_u32 s{sT0}, s{sT0}, {WS_WF}
        v_lshrrev_b32 v{x0}, 2, v{vL}
        v_and_b32 v{x1}, 3, v{vL}
        v_lshlrev_b32 v{x0}, 17, v{x0}
        v_lshl_add_u32 v{x0}, v{x1}, 7, v{x0}
        s_mov_b64 exec, 0xfff
        buffer_load_dword v{PP[0]}, v{x0}, s[{sWS}:{sWS+3}], s{sT0} offen
        s_mov_b64 exec, -1
        """)
    if cfg.get("bar0", 1):
        a("s_barrier")
    a(f"""
    s_add_u32 s{sT0}, s{sT1}, 8192
    s_add_u32 s{sT2}, s{sT1}, 16384
    s_mov_b32 s{sSp}, {WS_KC}
    buffer_load_dwordx2 {v(FB+2,2)}, v{T+7}, s[{sWS}:{sWS+3}], s{sSp} offen
    buffer_load_dwordx4 {v(P[0],4)}, v{T+4}, s[{sH}:{sH+3}], s{sT1} offen
    buffer_load_dwordx4 {v(P[0]+4,4)}, v{T+4}, s[{sH}:{sH+3}], s{sT0} offen
    buffer_load_dwordx4 {v(P[0]+8,4)}, v{T+4}, s[{sH}:{sH+3}], s{sT2} offen
    """)
    zero_fill(1)
    a(f"""
    s_cmp_lg_u32 s{sW}, 2
    s_cbranch_scc1 K2_nopad
    v_min_u32 v{x0}, 39, v{vL}
    v_sub_u32 v{x1}, v{vL}, v{x0}
    v_mul_u32_u24 v{x0}, 528, v{x0}
    v_lshl_add_u32 v{x0}, v{x1}, 4, v{x0}
    ds_write_b128 v{x0}, {v(T,4)} offset:{HT+512}
    K2_nopad:
    s_mov_b32 s{sJ0}, 0
    s_mov_b32 s{sR}, 128
    s_mov_b32 s{sLast}, 1
    s_mov_b32 s{sFirst}, 1
    s_mov_b32 s{sAdone}, 0
    s_lshl_b32 s{sT0}, s{sW}, 5
    v_add_u32 v{x4}, s{sT0}, v{vL}
    v_mul_u32_u24 v{x4}, {REC_STRIDE}, v{x4}
    v_add_u32 v{x7}, {WS_REC}, v{x4}
    s_lshl_b32 s{sT0}, s{sW}, 9
    s_add_u32 s{sT0}, s{sT0}, {MT}
    v_mov_b32 v{vLst}, s{sT0}
    v_lshlrev_b32 v{vW16}, 4, v{vL}
    s_lshl_b32 s{sWO}, s{sW}, 14
    s_add_u32 s{sWO}, s{sWO}, {WS_WF}
    """)

    def lane_consts():
        a(f"""
        s_mov_b32 s{sC4}, 0x11111111
        s_mov_b32 s{sC4+1}, 0x11111111
        s_mov_b32 s{sL}, {fbits(LOG2E_NEG)}
        s_lshl_b32 s{sRing}, s{sW}, 12
        s_add_u32 s{sRing}, s{sRing}, {RING}
        s_mov_b32 m0, s{sRing}
        s_add_u32 s{sG4}, s{sWS}, {WS_B-3072}
        s_addc_u32 s{sG4+1}, s{sWS+1}, 0
        s_or_b32 s{sG4+1}, s{sG4+1}, 0x2000000
        s_mov_b32 s{sG4+2}, 10000
        s_mov_b32 s{sG4+3}, 0x20000
        v_lshrrev_b32 v{x0}, 4, v{vL}
        v_xor_b32 v{x0}, v{x0}, v{vL}
        v_and_b32 v{x0}, 3, v{x0}
        s_lshl_b32 s{sT2}, s{sW}, 6
        v_lshl_add_u32 v{GI[1][1]+1}, v{x0}, 4, s{sT2}
        v_add_u32 v{GI[1][0]+1}, 1024, v{GI[1][1]+1}
        v_add_u32 v{GI[0][1]+1}, 2048, v{GI[1][1]+1}
        v_add_u32 v{GI[0][0]+1}, 3072, v{GI[1][1]+1}
        v_and_b32 v{x0}, 31, v{vL}
        v_lshrrev_b32 v{x1}, 5, v{vL}
        v_bfe_u32 v{x2}, v{vL}, 2, 2
        v_xor_b32 v{x2}, v{x2}, v{x1}
        v_lshlrev_b32 v{x2}, 4, v{x2}
        v_lshl_add_u32 v{x2}, v{x0}, 6, v{x2}
        v_add_u32 v{vR0}, s{sRing}, v{x2}
        v_xor_b32 v{x2}, 32, v{x2}
        v_add_u32 v{vR1}, s{sRing}, v{x2}
        v_lshrrev_b32 v{x2}, 2, v{x0}
        v_mul_u32_u24 v{x2}, 528, v{x2}
        v_lshl_add_u32 v{x2}, v{x1}, 3, v{x2}
        s_add_u32 s{sT0}, s{sT2}, {MT}
        v_add_u32 v{vMW}, s{sT0}, v{x2}
        v_lshlrev_b32 v{x1}, 3, v{x1}
        v_sub_u32 v{x0}, v{x0}, v{x1}
        v_and_b32 v{x1}, 1, v{x0}
        v_lshlrev_b32 v{x1}, 4, v{x1}
        v_mov_b32 v{x2}, 0x3f80
        v_lshlrev_b32 v{x1}, v{x1}, v{x2}
        v_ashrrev_i32 v{x0}, 1, v{x0}
        """)
        for k in range(4):
            a(f"v_cmp_eq_u32 vcc, {k}, v{x0}\nv_cmp_eq_u32 s[68:69], {8+k}, v{x0}\ns_nop 0")
            a(f"v_cndmask_b32_e64 v{ILO+k}, 0, v{x1}, vcc\nv_cndmask_b32_e64 v{IHI+k}, 0, v{x1}, s[68:69]")
        node_addrs(a, vL, vHB, vHS, (x0, x1, x2, x3), None, HT, 528, ZERO, sT1)
        out_addrs(a, vL, vOB, vOS, (x0, x1, x2, x3), None, HT, 528, sT2, sT1)
    if cfg.get("consts_early", 0):
        lane_consts()
    a(f"s_waitcnt vmcnt({4+npf})")
    stamp(a, cfg, "k2", 1)
    a(f"""
    v_and_b32 v{x0}, 0xffff, v{vInc}
    v_lshrrev_b32 v{vInc}, 16, v{vInc}
    v_mov_b32 v{vPre}, v{vInc}
    """)
    scan(a, vInc, "v_add_u32", 32)
    a(f"""
    v_sub_u32 v{vPre}, v{vInc}, v{vPre}
    v_readlane_b32 s{sTw}, v{vInc}, 31
    v_sub_u32 v{x0}, v{x0}, v{vPre}
    v_mad_i32_i24 v{vVal}, v{x0}, 20, v{x7}
    """)
    RA, RB = P[1], P[1] + 8
    a(f"""
    K2_expand:
    s_add_u32 s{sT0}, s{sJ0}, s{sR}
    v_cmp_lt_u32 vcc, v{vPre}, v{vInc}
    v_cmp_lt_u32 s[{sV0}:{sV0+1}], s{sJ0}, v{vInc}
    v_cmp_gt_u32 s[{sV1}:{sV1+1}], s{sT0}, v{vPre}
    v_subrev_u32 v{x0}, s{sJ0}, v{vPre}
    v_max_i32 v{x0}, 0, v{x0}
    v_lshl_add_u32 v{x0}, v{x0}, 2, v{vLst}
    v_lshl_add_u32 v{x1}, v{vL}, 2, v{vLst}
    s_and_b64 vcc, vcc, s[{sV0}:{sV0+1}]
    s_and_b64 exec, vcc, s[{sV1}:{sV1+1}]
    ds_write_b32 v{x0}, v{vVal}
    s_mov_b64 exec, -1
    ds_read2st64_b32 {v(x2,2)}, v{x1} offset0:0 offset1:1
    s_sub_i32 s{sT1}, s{sTw}, s{sJ0}
    s_max_i32 s{sT1}, s{sT1}, 0
    s_min_u32 s{sT1}, s{sT1}, s{sR}
    v_add_u32 v{x4}, 64, v{vL}
    v_cmp_gt_u32 s[{sV0}:{sV0+1}], s{sT1}, v{vL}
    v_cmp_gt_u32 s[{sV1}:{sV1+1}], s{sT1}, v{x4}
    v_add_u32 v{x4}, s{sJ0}, v{vL}
    v_mul_u32_u24 v{x4}, 20, v{x4}
    v_mov_b32 v{x5}, 0x7fffff00
    s_waitcnt lgkmcnt(0)
    """)
    scan2(a, x2, x3, "v_max_u32")
    a(f"""
    v_readlane_b32 s{sT0}, v{x2}, 63
    v_add_u32 v{x2}, v{x2}, v{x4}
    v_add_u32 v{x4}, {64*20}, v{x4}
    v_max_u32 v{x3}, s{sT0}, v{x3}
    v_add_u32 v{x3}, v{x3}, v{x4}
    v_cndmask_b32_e64 v{x2}, v{x5}, v{x2}, s[{sV0}:{sV0+1}]
    v_cndmask_b32_e64 v{x3}, v{x5}, v{x3}, s[{sV1}:{sV1+1}]
    buffer_load_dwordx4 {v(RA,4)}, v{x2}, s[{sWS}:{sWS+3}], 0 offen
    buffer_load_dwordx4 {v(RB,4)}, v{x3}, s[{sWS}:{sWS+3}], 0 offen
    buffer_load_dword v{RA+4}, v{x2}, s[{sWS}:{sWS+3}], 0 offen offset:16
    buffer_load_dword v{RB+4}, v{x3}, s[{sWS}:{sWS+3}], 0 offen offset:16
    s_cmp_eq_u32 s{sFirst}, 0
    s_cbranch_scc1 K2_again1
    """)
    stamp(a, cfg, "k2", 2)
    a(f"""
    v_lshrrev_b32 v{x0}, 5, v0
    v_and_b32 v{x1}, 31, v0
    v_mul_u32_u24 v{x0}, 528, v{x0}
    v_lshl_add_u32 v{x0}, v{x1}, 4, v{x0}
    s_waitcnt vmcnt(4)
    ds_write_b128 v{x0}, {v(P[0],4)} offset:{HT}
    ds_write_b128 v{x0}, {v(P[0]+4,4)} offset:{HT+8448}
    s_cmp_ge_u32 s{sW}, 4
    s_cbranch_scc1 K2_h2
    ds_write_b128 v{x0}, {v(P[0]+8,4)} offset:{HT+2*8448}
    K2_h2:
    """)
    if not cfg.get("consts_early", 0):
        lane_consts()
    for k in range(8):
        a(f"v_mov_b32 v{WX+k}, s{sWX + 4*(k>>1) + (k&1)}")
    a("s_mov_b32 exec_lo, 0")
    for k in range(8):
        a(f"v_mov_b32 v{WX+k}, s{sWX + 4*(k>>1) + 2 + (k&1)}")
    a(f"""
    s_mov_b32 exec_lo, -1
    s_add_u32 s{sWC}, s{sWS}, s{sWO}
    s_addc_u32 s{sWC+1}, s{sWS+1}, 0
    s_add_u32 s{sWC}, s{sWC}, 131072
    s_addc_u32 s{sWC+1}, s{sWC+1}, 0
    K2_back1:
    v_mov_b32 v{vOne}, 0x3f80
    v_mov_b32 v{x6}, 1
    v_mov_b32 v{x7}, s{sTw}
    v_mov_b32 v{x5}, {CNT+24}
    v_min_u32 v{x4}, 7, v{vL}
    v_lshlrev_b32 v{x4}, 2, v{x4}
    s_waitcnt lgkmcnt(0)
    s_barrier
    """)
    w1load(0)
    a(f"""
    s_mov_b64 exec, 1
    ds_max_u32 v{x5}, v{x7}
    s_mov_b64 exec, -1
    s_waitcnt vmcnt({2+w1s[0]})
    """)
    stamp(a, cfg, "k2", 3)
    for R, sv in ((RA, sV0), (RB, sV1)):
        a(f"""
        v_lshrrev_b32 v{R+5}, 1, v{R+3}
        v_and_b32 v{R+5}, 0x1c, v{R+5}
        s_mov_b64 exec, s[{sv}:{sv+1}]
        ds_add_rtn_u32 v{R+6}, v{R+5}, v{x6} offset:{CNT}
        s_mov_b64 exec, -1
        """)
    a(f"""
    v_lshlrev_b32 v{x6}, 1, v{vL}
    v_add_u32 v{x6}, 8, v{x6}
    v_cmp_gt_u32 vcc, 5, v{vL}
    s_waitcnt lgkmcnt(0)
    s_barrier
    ds_read_b32 v{x0}, v{x4} offset:{CNT}
    """)
    w1load(1)
    for R in (RA, RB):
        a(f"""
        v_lshrrev_b32 v{x1}, 5, v{R+6}
        v_mul_u32_u24 v{x1}, 3072, v{x1}
        v_and_b32 v{x2}, 7, v{R+3}
        v_lshl_add_u32 v{R+7}, v{x2}, 6, v{x1}
        v_and_b32 v{x2}, 16, v{R+6}
        v_lshl_add_u32 v{R+7}, v{x2}, 6, v{R+7}
        v_and_b32 v{x2}, 4, v{R+6}
        v_lshl_add_u32 v{R+7}, v{x2}, 7, v{R+7}
        v_and_b32 v{x2}, 3, v{R+6}
        v_lshl_add_u32 v{R+7}, v{x2}, 1, v{R+7}
        v_and_or_b32 v{R+7}, v{R+6}, 8, v{R+7}
        v_and_b32 v{x2}, 31, v{R+6}
        v_lshl_add_u32 v{R+6}, v{x2}, 4, v{x1}
        """)
    a(f"""
    s_waitcnt lgkmcnt(0)
    v_readlane_b32 s{sT1}, v{x0}, 6
    v_max_u32 v{x1}, 1, v{x0}
    v_add_u32 v{x2}, -1, v{x1}
    v_lshrrev_b32 v{x1}, 5, v{x2}
    v_add_u32 v{x1}, 1, v{x1}
    v_bfe_u32 v{x2}, v{x2}, 3, 2
    v_lshl_or_b32 v{x2}, v{x2}, v{x6}, v{x1}
    v_cndmask_b32_e64 v{x2}, 0, v{x2}, vcc
    """)
    for sh in (1, 2, 4):
        a(f"s_nop 1\nv_add_u32_dpp v{x2}, v{x2}, v{x2} row_shr:{sh} row_mask:0xf bank_mask:0xf bound_ctrl:1")
    a(f"""
    s_nop 0
    v_readlane_b32 s{sQ}, v{x2}, 4
    v_and_b32 v{x2}, 0xff, v{x2}
    v_sub_u32 v{x3}, v{x2}, v{x1}
    v_mul_u32_u24 v{x3}, 3072, v{x3}
    v_add_u32 v{x3}, {OPS}, v{x3}
    ds_bpermute_b32 v{RA+5}, v{RA+5}, v{x3}
    ds_bpermute_b32 v{RB+5}, v{RB+5}, v{x3}
    v_sub_u32 v{x2}, 32, v{x2}
    v_lshlrev_b32 v{x2}, v{x2}, 1
    v_cndmask_b32_e64 v{x2}, 0, v{x2}, vcc
    s_and_b32 s{sT0}, s{sQ}, 0xff
    s_lshr_b32 s{sQ}, s{sQ}, 8
    """)
    for sh in (1, 2, 4):
        a(f"v_add_u32_dpp v{x2}, v{x2}, v{x2} row_shr:{sh} row_mask:0xf bank_mask:0xf bound_ctrl:1\ns_nop 1")
    a(f"""
    v_readlane_b32 s{sM}, v{x2}, 4
    s_cmp_gt_u32 s{sT0}, {NBLK}
    s_cselect_b32 s{sOver}, 1, 0
    s_cmp_eq_u32 s{sFirst}, 0
    s_cbranch_scc1 K2_notfirst
    s_mov_b32 s{sTmax}, s{sT1}
    s_cmp_gt_u32 s{sT1}, 128
    s_cselect_b32 s{sOver}, 1, s{sOver}
    K2_notfirst:
    s_mov_b32 s{sFirst}, 0
    """)
    w1load(2)
    a(f"""
    s_cmp_lg_u32 s{sOver}, 0
    s_cbranch_scc1 K2_over1
    s_waitcnt vmcnt({w1c[3]}) lgkmcnt(0)
    """)
    for R, sv in ((RA, sV0), (RB, sV1)):
        a(f"""
        v_bfe_u32 v{x0}, v{R+3}, 2, 1
        v_and_b32 v{x1}, 3, v{R+3}
        v_add_u32 v{R+6}, v{R+6}, v{R+5}
        v_add_u32 v{R+7}, v{R+7}, v{R+5}
        v_lshl_add_u32 v{x0}, v{x0}, 9, v{R+6}
        v_lshl_add_u32 v{x0}, v{x1}, 1, v{x0}
        s_mov_b64 exec, s[{sv}:{sv+1}]
        ds_write_b64 v{R+6}, {v(R+2,2)} offset:520
        ds_write_b64 v{R+6}, {v(R,2)} offset:8
        ds_write_b16 v{x0}, v{vOne}
        ds_write_b16 v{R+7}, v{vOne} offset:1024
        ds_write_b16_d16_hi v{R+7}, v{R+2} offset:1040
        ds_write_b16 v{R+7}, v{R+4} offset:1056
        ds_write_b16_d16_hi v{R+7}, v{R+4} offset:1072
        s_mov_b64 exec, -1
        """)
    a(f"""
    v_add_u32 v{vA}, {OPS}, v{vW16}
    v_lshrrev_b32 v{x0}, 2, v{vL}
    v_lshlrev_b32 v{x0}, 4, v{x0}
    v_add_u32 v{vSr}, {OPS+512+14}, v{x0}
    """)
    w1load(3)
    a("s_waitcnt lgkmcnt(0)\ns_barrier")
    stamp(a, cfg, "k2", 4)
    if cfg.get("x_bench"):
        a(f"s_mov_b32 s{sM}, {hex(0x1f << (32-27))}\ns_mov_b32 s{sQ}, 0x3ff")
    a("\n".join(src_read(0, 0) + src_read(1, 1)))
    a("s_waitcnt lgkmcnt(2)")
    a("\n".join(dma(0)))
    a("s_waitcnt lgkmcnt(0)")
    a("\n".join(dma(1)))
    a(f"""
    K2_back2:
    s_cmp_lg_u32 s{sAdone}, 0
    s_cbranch_scc1 K2_adone
    """)
    wload(0, w1c[4], 16)
    stamp(a, cfg, "k2", 5)
    waits = {t: (19 - t if t < w1c[4] else 15 - t) for t in range(16)}
    gemm40(P[0], ACC, False, T, True, waits=waits)
    a(f"s_mov_b32 s{sAdone}, 1")
    for k in range(10):
        a(f"v_mov_b64 {v(CB+2*k,2)}, 0")
    for k in range(8):
        a(f"v_pk_mul_f32 {v(P[0]+2*k,2)}, {v(P[0]+2*k,2)}, s[{sL}:{sL+1}] op_sel_hi:[1,0]")
    for k in range(2):
        a(f"v_pk_mul_f32 {v(ACC+2*k,2)}, {v(ACC+2*k,2)}, s[{sL}:{sL+1}] op_sel_hi:[1,0]")
    for k in range(8):
        a(f"v_cvt_pk_bf16_f32 v{FB+k if k < 2 else AP+k-2}, v{P[0]+2*k}, v{P[0]+2*k+1}")
    for k in range(2):
        a(f"v_cvt_pk_bf16_f32 v{AP+6+k}, v{ACC+2*k}, v{ACC+2*k+1}")
    a(f"""
    K2_adone:
    s_cmp_lg_u32 s{sOver}, 0
    s_cbranch_scc1 K2_slowstart
    """)
    for k in range(4):
        a(f"v_mov_b64 {v(M+2*k,2)}, 0")
    for k in range(8):
        a(f"v_mov_b64 {v(ACC+2*k,2)}, 0")
    a(f"""
    s_mov_b32 s{sG}, 0
    s_mov_b32 s{sP}, 0
    s_mov_b32 s{sCO}, 0
    s_lshl_b32 s{sWC+2}, s{sLast}, 14
    v_mov_b32 v{vCB}, v{vHB}
    v_mov_b32 v{vCS}, v{vHS}
    s_cmp_lg_u32 s{sJ0}, 0
    s_cbranch_scc1 K2_reload0
    K2_back3:
    """)
    stamp(a, cfg, "k2", 6)

    def frag_reads(slot):
        return [f"ds_read_b128 {v(BF,4)}, v{vR0} offset:{2048*slot}",
                f"ds_read_b128 {v(BF+4,4)}, v{vR1} offset:{2048*slot}"]

    def pre_mfma(q):
        Q = v(P[q], 16)
        return [f"v_mfma_f32_32x32x16_bf16 {Q}, {v(FA,4)}, {v(FB,4)}, 0",
                f"v_mfma_f32_32x32x16_bf16 {Q}, {v(BF,4)}, {v(ILO,4)}, {Q}",
                f"v_mfma_f32_32x32x16_bf16 {Q}, {v(BF+4,4)}, {v(IHI,4)}, {Q}"]

    agg = [f"v_mfma_f32_32x32x16_bf16 {v(ACC,16)}, {v(M,4)}, {v(S,4)}, {v(ACC,16)}",
           f"v_mfma_f32_32x32x16_bf16 {v(ACC,16)}, {v(M+4,4)}, {v(S+4,4)}, {v(ACC,16)}"]
    cm = [f"v_mfma_f32_32x32x16_bf16 {v(CB,16)}, {v(WC,4)}, {v(HCB,4)}, {v(CB,16)}",
          f"v_mfma_f32_16x16x32_bf16 {v(CS,4)}, {v(WC,4)}, {v(HCS,4)}, {v(CS,4)}"]

    def c_load(k):
        return [f"buffer_load_dwordx4 {v(WC,4)}, v{vW16}, s[{sWC}:{sWC+3}], s{sCO} offen offset:{1024*k}"]

    def c_read(k):
        return [f"ds_read_b128 {v(HCB,4)}, v{vCB} offset:{32*k}", f"ds_read_b128 {v(HCS,4)}, v{vCS} offset:{32*k}"]

    a("s_waitcnt vmcnt(2)")
    a("\n".join(frag_reads(0) + src_read(0, 2) + [f"ds_read_b128 {v(FA,4)}, v{vA}"] + c_read(0) + c_load(0)
                + ["s_waitcnt lgkmcnt(0)"] + dma(0) + pre_mfma(0)))
    a(f"s_cmp_eq_u32 s{sLast}, 0\ns_cbranch_scc1 K2_nextw")
    wload(2, 0, w2c[1])
    npw = 0
    if cfg.get("prewrite_out", 0):
        npw = 2
        a(f"""
        s_mul_i32 s{sT1}, s{sB}, 20480
        v_lshl_add_u32 v{x0}, v0, 4, s{sT1}
        v_add_u32 v{x1}, 8192, v{x0}
        v_add_u32 v{x2}, 16384, v{x0}
        global_store_dwordx4 v{x0}, {v(M,4)}, s[20:21] {cfg.get('prewrite_out')}
        global_store_dwordx4 v{x1}, {v(M,4)}, s[20:21] {cfg.get('prewrite_out')}
        s_cmp_ge_u32 s{sW}, 4
        s_cbranch_scc1 K2_nopw
        global_store_dwordx4 v{x2}, {v(M,4)}, s[20:21] {cfg.get('prewrite_out')}
        K2_nopw:
        """)
    if prio:
        a(f"s_setprio 1")
    a(f"s_waitcnt vmcnt({2 + w2s[0] + npw})")
    stamp(a, cfg, "k2", 7)
    a("s_branch K2_next")

    def body(p, nq, last):
        n = 4 * nq
        Pp = P[p]
        E = [f"v_exp_f32 v{T+i}, v{Pp+i}" for i in range(n)]
        A = [f"v_pk_add_f32 {v(T+i,2)}, {v(T+i,2)}, 1.0 op_sel_hi:[1,0]" for i in range(0, n, 2)]
        Rr = [f"v_rcp_f32 v{T+i}, v{T+i}" for i in range(n)]
        U = [f"v_pk_mul_f32 {v(T+i,2)}, {v(T+i,2)}, {v(Pp+i,2)}" for i in range(0, n, 2)]
        C = [f"v_cvt_pk_bf16_f32 v{M+i//2}, v{T+i}, v{T+i+1}" for i in range(0, n, 2)]
        fa = f"ds_read_b128 {v(FA,4)}, v{vA} offset:{3072*(p+1)}"
        sread = [f"ds_read_b128 {v(S,4)}, v{vA} offset:{3072*p+1024}", f"ds_read_b128 {v(S+4,4)}, v{vA} offset:{3072*p+2048}"]
        if nq <= 2:
            sread = sread[:1]
        head = frag_reads(1 - p) + src_read(1 - p, p + 3)
        dm = c_load(p + 1) + [f"s_waitcnt lgkmcnt({1+len(sread)})"] + dma(1 - p) + c_read(p + 1)
        k0, k1, k2 = (3, 6, 10) if nq >= 3 else ((2, 4, 6) if nq == 2 else (1, 2, 4))
        seq = head + E[:k0] + [cm[0], fa] + sread + E[k0:k1] + [cm[1]] + E[k1:k2] + dm + E[k2:] + A
        if last:
            seq += [f"v_mov_b64 {v(x0,2)}, {v(FB,2)}", f"v_mov_b64 {v(FB,2)}, {v(AP,2)}"]
            seq += [f"v_mov_b64 {v(AP+2*k,2)}, {v(AP+2*k+2,2)}" for k in range(3)]
            seq += [f"v_mov_b64 {v(AP+6,2)}, {v(x0,2)}"]
        pm = pre_mfma(1 - p)
        seq += ["s_waitcnt lgkmcnt(0)"]
        if nq == 1:
            seq += [pm[0]] + Rr[:2] + [pm[1]] + Rr[2:4] + [pm[2]]
        else:
            seq += [pm[0]] + Rr[:3] + [pm[1]] + Rr[3:6] + [pm[2]] + Rr[6:]
        adv = []
        if p == 1:
            adv = [f"v_add_u32 v{vA}, 6144, v{vA}", f"v_add_u32 v{vSr}, 6144, v{vSr}"]
            seq += [f"v_add_u32 v{vCB}, 64, v{vCB}", f"v_add_u32 v{vCS}, 64, v{vCS}", f"s_add_u32 s{sCO}, s{sCO}, 2048"]
        if nq == 4:
            seq += U[:4] + C[:4] + U[4:] + [agg[0]] + C[4:]
            seq += (adv or ["s_nop 0"])
            if not last:
                seq += [f"s_add_u32 s{sM}, s{sM}, s{sM}"]
            elif p == 0:
                seq += ["s_nop 0"]
            seq += [agg[1]]
        elif nq == 3:
            seq += U + C + [agg[0]] + (adv or ["s_nop 1"]) + [agg[1]]
        else:
            seq += U + C + (adv or ["s_nop 1"]) + [agg[0]]
        a("\n".join(seq))

    a(".p2align 3")
    a("K2_g0w:\ns_waitcnt vmcnt(2)\nK2_g0:")
    body(0, 4, False)
    a("s_cbranch_scc1 K2_l1w\nK2_g1w:\ns_waitcnt vmcnt(2)\nK2_g1:")
    body(1, 4, False)
    a("s_cbranch_scc0 K2_g0w")
    for p in (0, 1):
        a(f"K2_l{p}w:\ns_waitcnt vmcnt(2)\nK2_l{p}:")
        if prio == 1:
            setprio(0, None)
        a(f"""
        s_mov_b32 s{sP}, {1-p}
        s_bitcmp0_b32 s{sQ}, 1
        s_cbranch_scc1 K2_l{p}_lo
        s_bitcmp0_b32 s{sQ}, 0
        s_cbranch_scc1 K2_l{p}_3
        """)
        body(p, 4, True)
        a(f"s_branch K2_flush\nK2_l{p}_3:")
        body(p, 3, True)
        a(f"s_branch K2_flush\nK2_l{p}_lo:\ns_bitcmp0_b32 s{sQ}, 0\ns_cbranch_scc1 K2_l{p}_1")
        body(p, 2, True)
        a(f"s_branch K2_flush\nK2_l{p}_1:")
        body(p, 1, True)
        if p == 0:
            a("s_branch K2_flush")
    a("K2_flush:")
    if cfg.get("stamps"):
        a(f"s_cmp_lg_u32 s{sG}, {cfg.get('stamp_g', 0)}\ns_cbranch_scc1 K2_nost")
        stamp(a, cfg, "k2", 13)
        a("K2_nost:")
    a(f"""
    s_lshr_b32 s{sQ}, s{sQ}, 2
    s_cmp_eq_u32 s{sLast}, 0
    s_cbranch_scc1 K2_spill
    s_nop 8
    """)
    for k in range(8):
        a(f"v_cvt_pk_bf16_f32 v{T+k}, v{ACC+2*k}, v{ACC+2*k+1}")
    a(f"s_mov_b64 exec, s[{sC4}:{sC4+1}]")
    for q in range(4):
        a(f"ds_write_b64 v{vMW}, {v(T+2*q,2)} offset:{16*q}")
    a("s_mov_b64 exec, -1")
    for k in range(8):
        a(f"v_dot2_f32_bf16 v{x0}, v{T+k}, v{WX+k}, {'0' if k == 0 else v(x0)}")
    a(f"v_add_u32 v{vMW}, {8*528}, v{vMW}")
    for k in range(8):
        a(f"v_mov_b64 {v(ACC+2*k,2)}, 0")
    a(f"""
    s_cmp_lg_u32 s{sJ0}, 0
    s_cbranch_scc1 K2_reload
    K2_flushb:
    s_add_u32 s{sG}, s{sG}, 1
    """)
    for g in range(4):
        a(f"s_cmp_eq_u32 s{sG}, {g+1}\ns_cbranch_scc1 K2_x{g}")
    stamp(a, cfg, "k2", 8)
    a(f"""
    s_setprio 0
    s_lshl_b32 s{sT0}, s{sP}, 10
    s_add_u32 s{sCO}, s{sCO}, s{sT0}
    s_cmp_lt_u32 s{sCO}, 16384
    s_cbranch_scc1 K2_crest
    K2_cdone:
    """)
    for q in range(4):
        a(f"ds_read_b64 {v(HR+2*q,2)}, v{vOB} offset:{16*q}")
    a(f"""
    ds_read_b64 {v(HR+8,2)}, v{vOS}
    s_mul_i32 s{sT0}, s{sB}, 240
    v_mov_b32 v{x3}, v{x0}
    v_min_u32 v{x0}, 119, v0
    v_lshl_add_u32 v{x1}, v{x0}, 1, s{sT0}
    global_load_ushort v{vPOS}, v{x1}, s[66:67]
    v_cmp_ne_u32 vcc, {ZERO}, v{vHS}
    v_add_u32 v{vHB}, {MT-HT}, v{vHB}
    v_add_u32 v{x2}, {MT-HT}, v{vHS}
    v_cndmask_b32_e64 v{vHS}, v{vHS}, v{x2}, vcc
    v_lshl_add_u32 v{x2}, v{vL}, 2, s{sRing}
    """)
    for k in range(10):
        a(f"v_pk_mul_f32 {v(CB+2*k,2)}, {v(CB+2*k,2)}, s[{sL}:{sL+1}] op_sel_hi:[1,0]")
    a(f"""
    s_waitcnt vmcnt(1)
    ds_write2st64_b32 v{x2}, v{PP[0]}, v{PP[1]} offset0:0 offset1:1
    ds_write2st64_b32 v{x2}, v{PP[2]}, v{PP[3]} offset0:2 offset1:3
    ds_write_b32 v{x2}, v{x3} offset:1024
    s_waitcnt lgkmcnt(0)
    s_barrier
    """)
    stamp(a, cfg, "k2", 9)
    gemm40(CB, CS, True, P[0], False)
    a(f"""
    v_mul_u32_u24 v{x1}, 171, v{x0}
    v_lshrrev_b32 v{x1}, 9, v{x1}
    v_add3_u32 v{x1}, v{x0}, v{x1}, 1
    v_lshrrev_b32 v{x2}, 5, v{x1}
    v_lshlrev_b32 v{x1}, 2, v{x1}
    v_lshl_add_u32 v{x1}, v{x2}, 7, v{x1}
    v_add_u32 v{x1}, {RING}, v{x1}
    s_cmp_ge_u32 s{sW}, 2
    s_cbranch_scc1 K2_nopp
    v_add_u32 v{x2}, 128, v{x1}
    """)
    for k in range(4):
        a(f"ds_read2st64_b32 {v(ACC+4*k,2)}, v{x1} offset0:{32*k} offset1:{32*k+16}")
        a(f"ds_read2st64_b32 {v(ACC+4*k+2,2)}, v{x2} offset0:{32*k} offset1:{32*k+16}")
    a(f"""
    K2_nopp:
    s_mov_b32 s{sT2}, {fbits(LN2_NEG)}
    v_lshrrev_b32 v{x2}, 5, v0
    v_and_b32 v{x3}, 31, v0
    v_mul_u32_u24 v{x2}, 528, v{x2}
    v_lshl_add_u32 v{x2}, v{x3}, 4, v{x2}
    s_mul_i32 s{sT1}, s{sB}, 20480
    v_lshl_add_u32 v{x3}, v0, 4, s{sT1}
    """)
    stamp(a, cfg, "k2", 10)
    E0 = P[0]
    for i in range(20):
        a(f"v_exp_f32 v{E0+i}, v{CB+i}")
    for i in range(0, 20, 2):
        a(f"v_pk_add_f32 {v(E0+i,2)}, {v(E0+i,2)}, 1.0 op_sel_hi:[1,0]")
    for i in range(20):
        a(f"v_rcp_f32 v{E0+i}, v{E0+i}")
    for i in range(0, 20, 2):
        a(f"v_pk_mul_f32 {v(E0+i,2)}, {v(E0+i,2)}, {v(CB+i,2)}")
    for i in range(10):
        a(f"v_lshlrev_b32 v{CB+2*i}, 16, v{HR+i}\nv_and_b32 v{CB+2*i+1}, 0xffff0000, v{HR+i}")
    for i in range(0, 20, 2):
        a(f"v_pk_fma_f32 {v(E0+i,2)}, {v(E0+i,2)}, s[{sT2}:{sT2+1}], {v(CB+i,2)} op_sel_hi:[1,0,1]")
    for i in range(10):
        a(f"v_cvt_pk_bf16_f32 v{T+i}, v{E0+2*i}, v{E0+2*i+1}")
    for q in range(4):
        a(f"ds_write_b64 v{vOB}, {v(T+2*q,2)} offset:{16*q}")
    a(f"""
    ds_write_b64 v{vOS}, {v(T+8,2)}
    s_mul_i32 s{sT0}, s{sB}, 240
    s_add_u32 s{sT0}, s{sT0}, 5120000
    v_lshl_add_u32 v{x0}, v{x0}, 1, s{sT0}
    v_add_u32 v{x4}, 8192, v{x3}
    v_add_u32 v{x5}, 16384, v{x3}
    s_waitcnt vmcnt(0) lgkmcnt(0)
    s_barrier
    ds_read_b128 {v(P[0],4)}, v{x2} offset:{HT}
    ds_read_b128 {v(P[0]+4,4)}, v{x2} offset:{HT+8448}
    s_cmp_ge_u32 s{sW}, 4
    s_cbranch_scc1 K2_o2
    ds_read_b128 {v(P[0]+8,4)}, v{x2} offset:{HT+2*8448}
    s_cmp_ge_u32 s{sW}, 2
    s_cbranch_scc1 K2_o3
    """)
    for n in (8, 4, 2):
        for k in range(0, n, 2):
            a(f"v_pk_add_f32 {v(ACC+k,2)}, {v(ACC+k,2)}, {v(ACC+n+k,2)}")
    a(f"""
    v_lshlrev_b32 v{vPOS}, 16, v{vPOS}
    v_add_f32 v{x7}, v{ACC}, v{ACC+1}
    v_fma_f32 v{x7}, v{x7}, s{sT2}, v{vPOS}
    v_cvt_pk_bf16_f32 v{x7}, v{x7}, v{x7}
    v_cmp_gt_u32 vcc, 120, v0
    s_mov_b64 exec, vcc
    global_store_short v{x0}, v{x7}, s[20:21] {ost}
    s_mov_b64 exec, -1
    K2_o3:
    s_waitcnt lgkmcnt(0)
    global_store_dwordx4 v{x5}, {v(P[0]+8,4)}, s[20:21] {ost}
    K2_o2:
    s_waitcnt lgkmcnt(0)
    global_store_dwordx4 v{x3}, {v(P[0],4)}, s[20:21] {ost}
    global_store_dwordx4 v{x4}, {v(P[0]+4,4)}, s[20:21] {ost}
    """)
    stamp(a, cfg, "k2", 11)
    stamp(a, cfg, "k2", 12, wait=True)
    stamp_flush(a, cfg, "k2", sWS)
    a("K2_exit:\ns_endpgm")

    for g in range(4):
        a(f"K2_x{g}:\nv_mov_b32 v{PP[g]}, v{x0}")
        wload(2, w2c[g + 1], w2c[g + 2])
        a(f"s_waitcnt vmcnt({2+w2s[g+1]})")
        if g < 3:
            a("s_branch K2_next")
    a("K2_next:")
    if prio == 1:
        setprio(2, None)
    a(f"""
    s_add_u32 s{sM}, s{sM}, s{sM}
    s_cbranch_scc1 K2_nextl
    s_cmp_eq_u32 s{sP}, 0
    s_cbranch_scc1 K2_g0
    s_branch K2_g1
    K2_nextl:
    s_cmp_eq_u32 s{sP}, 0
    s_cbranch_scc1 K2_l0
    s_branch K2_l1
    """)
    a(f"""
    K2_crest:
    s_lshr_b32 s{sT0}, s{sCO}, 5
    v_add_u32 v{vCB}, s{sT0}, v{vHB}
    v_add_u32 v{vCS}, s{sT0}, v{vHS}
    s_waitcnt vmcnt(0) lgkmcnt(0)
    """)
    a("\n".join(c_load(0) + c_read(0) + ["s_waitcnt vmcnt(0) lgkmcnt(0)"] + cm))
    a(f"""
    s_add_u32 s{sCO}, s{sCO}, 1024
    s_cmp_lt_u32 s{sCO}, 16384
    s_cbranch_scc1 K2_crest
    s_nop 7
    s_branch K2_cdone
    """)

    def spill_addr(greg):
        a(f"""
        s_lshl_b32 s{sSp}, s2, 3
        s_add_u32 s{sSp}, s{sSp}, s{sW}
        s_mul_i32 s{sSp}, s{sSp}, 5
        s_add_u32 s{sSp}, s{sSp}, s{greg}
        s_lshl_b32 s{sSp}, s{sSp}, 12
        s_add_u32 s{sSp}, s{sSp}, {WS_SPILL}
        """)

    def spill_load():
        for k in range(4):
            a(f"buffer_load_dwordx4 {v(ACC+4*k,4)}, v{vW16}, s[{sWS}:{sWS+3}], s{sSp} offen offset:{1024*k} sc1")
        a("s_waitcnt vmcnt(0)")
    a(f"""
    K2_nextw:
    s_waitcnt vmcnt(0) lgkmcnt(0)
    s_nop 7
    s_branch K2_next
    K2_again1:
    s_waitcnt vmcnt(0)
    s_branch K2_back1
    K2_over1:
    """)
    wload(0, w1c[3], w1c[4])
    a(f"""
    s_waitcnt vmcnt(0) lgkmcnt(0)
    s_branch K2_back2
    K2_slowstart:
    s_mov_b32 s{sR}, {SLOW_R}
    s_branch K2_setlast
    K2_nextpass:
    s_add_u32 s{sJ0}, s{sJ0}, {SLOW_R}
    K2_setlast:
    s_add_u32 s{sT0}, s{sJ0}, {SLOW_R}
    s_cmp_ge_u32 s{sT0}, s{sTmax}
    s_cselect_b32 s{sLast}, 1, 0
    s_waitcnt vmcnt(0) lgkmcnt(0)
    s_barrier
    """)
    zero_fill()
    a("s_branch K2_expand")
    a("K2_spill:\ns_nop 4")
    spill_addr(sG)
    for k in range(4):
        a(f"buffer_store_dwordx4 {v(ACC+4*k,4)}, v{vW16}, s[{sWS}:{sWS+3}], s{sSp} offen offset:{1024*k} sc1")
    a("s_waitcnt vmcnt(0)")
    for k in range(8):
        a(f"v_mov_b64 {v(ACC+2*k,2)}, 0")
    a(f"""
    s_add_u32 s{sG}, s{sG}, 1
    s_cmp_ge_u32 s{sG}, 5
    s_cbranch_scc1 K2_nextpass
    s_cmp_eq_u32 s{sJ0}, 0
    s_cbranch_scc1 K2_nextw
    """)
    spill_addr(sG)
    spill_load()
    a(f"""
    s_branch K2_nextw
    K2_reload:
    s_add_u32 s{sT0}, s{sG}, 1
    s_cmp_ge_u32 s{sT0}, 5
    s_cbranch_scc1 K2_flushb
    """)
    spill_addr(sT0)
    spill_load()
    a(f"s_branch K2_flushb\nK2_reload0:")
    spill_addr(sG)
    spill_load()
    a("s_branch K2_back3")
    return dict(vgpr=((al.n + 7) // 8) * 8, sgpr=100 if cfg.get("stamps") else 72, lds=K2_LDS, threads=512, grid=256)
```

```python
import re


class Asm:
    def __init__(self):
        self.lines = []
        self._uid = 0

    def __call__(self, text):
        for ln in text.split("\n"):
            s = ln.strip()
            if s:
                self.lines.append(s)

    def label(self, name):
        self.lines.append(name + ":")

    def uid(self, base):
        self._uid += 1
        return f"{base}_{self._uid}"

    def text(self):
        out = []
        for s in self.lines:
            if s.endswith(":") or s.startswith("."):
                out.append(s)
            else:
                out.append("    " + s)
        return "\n".join(out) + "\n"


def v(a, n=1):
    return f"v{a}" if n == 1 else f"v[{a}:{a+n-1}]"


def s(a, n=1):
    return f"s{a}" if n == 1 else f"s[{a}:{a+n-1}]"


_REG = re.compile(r"^(-|abs\()?([vsa])(\d+)\)?$")
_RNG = re.compile(r"^([vsa])\[(\d+):(\d+)\]$")
TRANS = ("v_exp_", "v_log_", "v_rcp_", "v_rsq_", "v_sqrt_", "v_sin_", "v_cos_")


def regs_of(tok):
    tok = tok.strip()
    m = _REG.match(tok)
    if m:
        return {(m.group(2), int(m.group(3)))}
    m = _RNG.match(tok.lstrip("-"))
    if m:
        return {(m.group(1), i) for i in range(int(m.group(2)), int(m.group(3)) + 1)}
    if tok == "vcc":
        return {("s", "vcc")}
    if tok in ("vcc_lo", "vcc_hi"):
        return {("s", "vcc")}
    if tok in ("exec", "exec_lo", "exec_hi"):
        return {("s", "exec")}
    if tok == "m0":
        return {("s", "m0")}
    return set()


class Ins:
    def __init__(self, text, idx):
        self.text = text
        self.idx = idx
        t = text.split(";")[0].strip()
        parts = t.split(None, 1)
        self.op = parts[0]
        rest = parts[1] if len(parts) > 1 else ""
        ops = [x.strip() for x in re.split(r",(?![^\[]*\])", rest)] if rest else []
        self.mods = ""
        if ops:
            last = ops[-1].split(None, 1)
            if len(last) > 1:
                ops[-1] = last[0]
                self.mods = last[1]
        self.ops = ops
        op = self.op
        self.is_valu = op.startswith("v_")
        self.is_mfma = op.startswith("v_mfma") or op.startswith("v_smfmac")
        self.is_trans = op.startswith(TRANS)
        self.is_dot = op.startswith("v_dot")
        self.is_ds = op.startswith("ds_")
        self.is_vmem = op.startswith(("buffer_", "global_", "flat_"))
        self.is_salu = op.startswith("s_")
        self.is_dpp = "_dpp" in op or "row_" in self.mods or "quad_perm" in self.mods
        self.lds_dma = self.is_vmem and ("_lds_" in op or re.search(r"\blds\b", self.mods) is not None)
        self.dst, self.src = set(), set()
        R = [regs_of(o) for o in ops]
        if self.is_valu:
            if op.startswith("v_cmpx"):
                self.dst = R[0] | {("s", "exec")}
                for r in R[1:]:
                    self.src |= r
            elif op.startswith(("v_add_co", "v_sub_co", "v_addc_co", "v_subb_co", "v_subrev_co")):
                self.dst = R[0] | R[1]
                for r in R[2:]:
                    self.src |= r
            elif op.startswith(("v_permlane32_swap", "v_permlane16_swap", "v_swap")):
                self.dst = R[0] | R[1]
                self.src = R[0] | R[1]
            elif op == "v_nop":
                pass
            else:
                self.dst = R[0]
                for r in R[1:]:
                    self.src |= r
                if op.startswith(("v_fmac", "v_dot2c", "v_pk_fmac", "v_writelane")) or self.is_dpp or "_sdwa" in op:
                    self.src |= R[0]
            if self.is_mfma:
                self.srcA, self.srcB, self.srcC = R[1], R[2], R[3]
                self.passes = 8 if "32x32" in op else 4
        elif self.is_ds:
            if op.startswith(("ds_read", "ds_bpermute", "ds_permute", "ds_swizzle")) or "_rtn" in op:
                self.dst = R[0]
                for r in R[1:]:
                    self.src |= r
            else:
                for r in R:
                    self.src |= r
        elif self.is_vmem:
            if "load" in op and not self.lds_dma:
                self.dst = R[0]
                for r in R[1:]:
                    self.src |= r
            else:
                for r in R:
                    self.src |= r
            self.store_data = set()
            if "store" in op and ("x3" in op or "x4" in op):
                self.store_data = R[0] if op.startswith("buffer") else R[1]
        elif self.is_salu:
            nodst = ("s_cmp", "s_bitcmp", "s_cbranch", "s_branch", "s_waitcnt", "s_nop", "s_barrier", "s_endpgm",
                     "s_setprio", "s_sleep", "s_setpc")
            if not op.startswith(nodst) and R:
                self.dst = R[0]
                for r in R[1:]:
                    self.src |= r
                if "saveexec" in op:
                    self.dst |= {("s", "exec")}
            else:
                for r in R:
                    self.src |= r

    def states(self):
        if self.op == "s_nop":
            return int(self.ops[0], 0) + 1
        return 1


def vg(rs):
    return {r for r in rs if r[0] in "va"}


def sg(rs):
    return {r for r in rs if r[0] == "s"}


def need(p, c):
    n = 0
    if p.is_valu and not p.is_mfma:
        wv, ws = vg(p.dst), sg(p.dst)
        if c.is_mfma and wv & (c.srcA | c.srcB | c.srcC):
            n = max(n, 3 if p.is_dot else 2)
        if c.is_valu and c.is_dpp and wv & c.src:
            n = max(n, 2)
        if c.op.startswith(("v_readlane", "v_readfirstlane")) and wv & c.src:
            n = max(n, 1)
        if c.op.startswith("v_permlane") and wv & c.src:
            n = max(n, 2)
        if p.is_trans and c.is_valu and not c.is_trans and wv & c.src:
            n = max(n, 1)
        if ("_sdwa" in p.op or "op_sel:" in p.mods) and c.is_valu and wv & (c.src | c.dst):
            n = max(n, 1)
        if p.is_dot and (c.is_valu or c.is_ds or c.is_vmem) and wv & (c.src | c.dst):
            same_c = False
            if c.op == p.op:
                ab = set()
                for o in c.ops[1:3]:
                    ab |= regs_of(o)
                same_c = not (wv & ab)
            if not same_c:
                n = max(n, 3)
        wsx = ws - {("s", "exec")}
        if wsx:
            if c.is_valu and wsx & c.src:
                n = max(n, 4 if c.op.startswith(("v_readlane", "v_writelane")) else 2)
            if c.is_vmem and wsx & c.src:
                n = max(n, 5)
        if ("s", "exec") in ws:
            if c.is_valu and c.is_dpp:
                n = max(n, 5)
            if c.op.startswith(("v_readlane", "v_readfirstlane", "v_writelane", "v_permlane")) or c.is_mfma:
                n = max(n, 4)
    if p.is_mfma:
        D = p.dst
        big = {4: 8, 8: 12}[p.passes]
        if c.is_mfma:
            if D & (c.srcA | c.srcB):
                n = max(n, big)
            if D & c.srcC:
                if not (c.srcC == D and c.passes == p.passes):
                    n = max(n, {4: 6, 8: 10}[p.passes])
            elif D & c.dst:
                n = max(n, {4: 6, 8: 10}[p.passes])
        elif (c.is_valu or c.is_ds or c.is_vmem) and D & (c.src | c.dst):
            n = max(n, big)
        if c.is_valu and not c.is_mfma and p.srcC & c.dst:
            n = max(n, {4: 3, 8: 7}[p.passes])
    if p.is_salu and ("s", "m0") in p.dst and (c.lds_dma or "addtid" in c.op):
        n = max(n, 1)
    if p.is_vmem and getattr(p, "store_data", None) and p.store_data & c.dst:
        n = max(n, 2 if c.is_valu else 1)
    return n


MAXW = 12


def check_hazards(lines):
    ins, labels = [], {}
    for ln in lines:
        t = ln.split(";")[0].strip()
        if not t or t.startswith("."):
            continue
        if t.endswith(":"):
            labels[t[:-1]] = len(ins)
            continue
        ins.append(Ins(t, len(ins)))

    def succ(i):
        x = ins[i]
        if x.op == "s_endpgm":
            return []
        if x.op == "s_branch":
            return [labels[x.ops[0]]]
        r = [i + 1] if i + 1 < len(ins) else []
        if x.op.startswith("s_cbranch"):
            r.append(labels[x.ops[0]])
        return r

    problems = []
    for p in ins:
        if not (p.is_valu or p.is_salu or p.is_vmem):
            continue
        stack = [(j, 0) for j in succ(p.idx)]
        seen = {}
        while stack:
            j, d = stack.pop()
            if j >= len(ins) or d >= MAXW or seen.get(j, 99) <= d:
                continue
            seen[j] = d
            c = ins[j]
            n = need(p, c)
            if n > d:
                problems.append(f"hazard: need {n} have {d}: [{p.idx}] {p.text}  ->  [{c.idx}] {c.text}")
            for k in succ(j):
                stack.append((k, d + c.states()))
    return problems


class Lgkm:
    def __init__(self, a):
        self.a = a
        self.q = []

    def op(self, text, tag):
        self.a(text)
        self.q.append(tag)
        assert len(self.q) <= 15, "lgkmcnt overflow"

    def wait(self, *tags, extra=""):
        idx = max((i for i, t in enumerate(self.q) if t in tags), default=-1)
        if idx < 0 and not extra:
            return
        n = len(self.q) - 1 - idx
        self.a(f"s_waitcnt {extra} lgkmcnt({n})" if idx >= 0 else f"s_waitcnt {extra}")
        self.q = self.q[idx + 1:]
```

```python
from asmlib import Asm, Lgkm, v, s
from common import *

HIST, STARTS, REC = 0, 1024, 2048
STG = REC + REC_STRIDE + 256
HT = STG + 80 * 272 + 256
WT = HT + 80 * 512
K1_LDS = WT + 65536
K1_THREADS = 896
assert HT % 512 == 0 and WT % 256 == 0 and K1_LDS <= 163840


def gen_k1(a: Asm, cfg):
    st = cfg.get("k1_store", "sc1")
    PRE = cfg.get("k1_pre", 6)
    RECB = cfg.get("k1_recb", 3)
    HB1 = cfg.get("k1_hb1", 10)
    GPOS = cfg.get("k1_gpos", 0)
    EAP = cfg.get("k1_eap", 1)
    sWAVE, sRT, sHALF, sT0, sT1, sT2 = 36, 37, 38, 39, 42, 43
    sEDGE = 40
    sPOS = 24
    sTASK = 45
    vL = 1
    vX0, vX1, vX2, vX3 = 6, 7, 8, 9
    a.label(K1_NAME)
    a(f"""
    s_cmp_ge_u32 s2, 256
    s_cbranch_scc1 K1_exit
    s_load_dwordx16 s[4:19], s[0:1], 0
    s_load_dwordx2 s[20:21], s[0:1], 80
    """)
    stamp(a, cfg, "k1", 0)
    a(f"""
    v_lshrrev_b32 v{vX0}, 6, v0
    v_and_b32 v{vL}, 63, v0
    v_readfirstlane_b32 s{sWAVE}, v{vX0}
    s_and_b32 s{sT0}, s2, 7
    s_lshr_b32 s{sT1}, s2, 3
    s_and_b32 s{sHALF}, s{sT1}, 1
    s_lshr_b32 s{sT1}, s{sT1}, 1
    s_lshl_b32 s{sT1}, s{sT1}, 3
    s_add_u32 s{sRT}, s{sT1}, s{sT0}
    s_cmp_ge_u32 s{sWAVE}, 4
    s_cbranch_scc1 K1_sort
    """)
    vWA, vHA, vSB = 2, 10, 3
    vGH, vGW = 4, 5
    a(f"""
    v_lshlrev_b32 v{vX1}, 2, v0
    v_mov_b32 v{vX2}, 0
    ds_write_b32 v{vX1}, v{vX2}
    s_cmp_ge_u32 s{sRT}, 125
    s_cbranch_scc1 K1_idle
    v_lshrrev_b32 v{vX0}, 4, v{vL}
    v_and_b32 v{vX1}, 15, v{vL}
    v_lshlrev_b32 v{vGW}, 2, v{vX0}
    v_xor_b32 v{vX1}, v{vX1}, v{vGW}
    v_lshlrev_b32 v{vX1}, 4, v{vX1}
    v_lshl_add_u32 v{vX1}, v{vX0}, 9, v{vX1}
    s_lshl_b32 s{sT0}, s{sWAVE}, 15
    s_lshl_b32 s{sT1}, s{sHALF}, 8
    s_add_u32 s{sT0}, s{sT0}, s{sT1}
    s_add_u32 s{sT0}, s{sT0}, {256*512}
    v_add_u32 v{vGW}, s{sT0}, v{vX1}
    v_lshrrev_b32 v{vX0}, 5, v{vL}
    v_and_b32 v{vX1}, 31, v{vL}
    s_lshl_b32 s{sT0}, s{sWAVE}, 1
    v_add_u32 v{vX2}, s{sT0}, v{vX0}
    v_xor_b32 v{vX3}, v{vX2}, v{vX1}
    s_mul_i32 s{sT1}, s{sRT}, 80
    v_add_u32 v{vX2}, s{sT1}, v{vX2}
    v_lshlrev_b32 v{vX2}, 9, v{vX2}
    v_lshl_add_u32 v{vGH}, v{vX3}, 4, v{vX2}
    v_xor_b32 v18, 128, v{vGH}
    v_add_u32 v18, 4096, v18
    s_lshl_b32 s{sT0}, s{sWAVE}, 10
    s_add_u32 s{sT0}, s{sT0}, {HT}
    s_lshl_b32 s{sT1}, s{sWAVE}, 14
    s_add_u32 s{sT1}, s{sT1}, {WT}
    s_waitcnt lgkmcnt(0)
    """)
    stamp(a, cfg, "k1", 7)
    loads, hl = [], []
    for i in range(10):
        r = vGH if i % 2 == 0 else 18
        hl.append([f"s_add_u32 m0, s{sT0}, {4096*i}", f"v_add_u32 v{r}, 8192, v{r}" if i >= 2 else "s_nop 0",
                      f"global_load_lds_dwordx4 v{r}, s[4:5]"])
    for i in range(16):
        loads.append([f"s_add_u32 m0, s{sT1}, {1024*i}", f"v_add_u32 v{vGW}, 2048, v{vGW}" if i else "s_nop 0",
                      f"global_load_lds_dwordx4 v{vGW}, s[14:15]"])
    loads = loads + hl[:HB1]
    for t in loads[:PRE]:
        a("\n".join(t))
    a("s_branch K1_gemm2")
    vDST, vSRC, vEA = 2, 3, 4
    vPS = 12
    vBK, vDL, vRK = 14, 15, 16
    vF = 36
    vC = 44
    a(f"""
    K1_sort:
    v_subrev_u32 v{vX0}, 256, v0
    v_cmp_gt_u32 vcc, 625, v{vX0}
    s_mul_i32 s{sT0}, s2, 625
    v_min_u32 v{vX0}, 624, v{vX0}
    v_add_u32 v{vX0}, s{sT0}, v{vX0}
    s_mov_b64 s[{sEDGE}:{sEDGE+1}], vcc
    v_lshlrev_b32 v{vX1}, 2, v{vX0}
    v_lshlrev_b32 v18, 3, v{vX0}
    s_mov_b32 s{sPOS+2}, 60000
    s_mov_b32 s{sPOS+3}, 0x20000
    s_lshl_b32 s{sTASK}, s2, 1
    s_add_u32 s{sTASK}, s{sTASK}, s{sWAVE}
    s_sub_u32 s{sTASK}, s{sTASK}, 4
    s_cmp_ge_u32 s{sWAVE}, 6
    s_cselect_b32 s{sTASK}, 1000, s{sTASK}
    v_mov_b32 v{vX3}, 1
    s_waitcnt lgkmcnt(0)
    global_load_dword v{vDST}, v{vX1}, s[12:13]
    global_load_dword v{vSRC}, v{vX1}, s[10:11]
    """)
    ea = f"global_load_dwordx2 v[{vEA}:{vEA+1}], v18, s[8:9]"
    gather = f"buffer_load_dwordx2 v[{vPS}:{vPS+1}], v{vX1}, s[{sPOS}:{sPOS+3}], 0 offen"
    if EAP == 0:
        a(ea)
    stamp(a, cfg, "k1", 7)
    a(f"""
    s_barrier
    s_mov_b32 s{sPOS}, s6
    s_mov_b32 s{sPOS+1}, s7
    v_lshlrev_b32 v{vX2}, 4, v{vL}
    s_waitcnt vmcnt({1 if EAP == 0 else 0})
    """)
    stamp(a, cfg, "k1", 8)
    a(f"""
    v_mul_u32_u24 v{vBK}, {52429}, v{vDST}
    v_mul_u32_u24 v{vX1}, 6, v{vSRC}
    v_lshrrev_b32 v{vBK}, 21, v{vBK}
    v_mul_u32_u24 v{vDL}, 40, v{vBK}
    v_lshlrev_b32 v{vBK}, 2, v{vBK}
    s_mov_b64 exec, s[{sEDGE}:{sEDGE+1}]
    ds_add_rtn_u32 v{vRK}, v{vBK}, v{vX3}
    s_mov_b64 exec, -1
    v_and_b32 v{vX1}, -4, v{vX1}
    v_sub_u32 v{vDL}, v{vDST}, v{vDL}
    v_lshl_or_b32 v{vDL}, v{vSRC}, 16, v{vDL}
    {gather if GPOS == 0 else ""}
    s_waitcnt lgkmcnt(0)
    """)
    stamp(a, cfg, "k1", 1)
    a(f"""
    s_barrier
    {gather if GPOS == 1 else ""}
    {ea if EAP == 1 else ""}
    """)
    stamp(a, cfg, "k1", 2)
    c0, sm, inc, o0 = vC, vC + 4, vC + 5, vC + 8
    a(f"""
    ds_read_b128 {v(c0,4)}, v{vX2} offset:{HIST}
    s_cmp_ge_u32 s{sTASK}, 392
    s_cbranch_scc1 K1_notask
    """)
    a(f"""
    s_cmp_lt_u32 s{sTASK}, 128
    s_cselect_b32 s46, s14, s18
    s_cselect_b32 s47, s15, s19
    s_cmp_ge_u32 s{sTASK}, 256
    s_cselect_b32 s{sT0}, {256*512}, 0
    s_and_b32 s{sT1}, s{sTASK}, 15
    s_lshl_b32 s{sT1}, s{sT1}, 13
    s_add_u32 s{sT0}, s{sT0}, s{sT1}
    s_bfe_u32 s{sT1}, s{sTASK}, 0x30004
    s_lshl_b32 s{sT1}, s{sT1}, 6
    s_add_u32 s{sT0}, s{sT0}, s{sT1}
    v_lshrrev_b32 v{vX0}, 5, v{vL}
    v_and_b32 v{vX1}, 31, v{vL}
    v_lshlrev_b32 v{vX3}, 12, v{vX0}
    s_cmp_lt_u32 s{sTASK}, 384
    s_cbranch_scc1 K1_nokc
    v_lshlrev_b32 v{vX3}, 9, v{vX0}
    v_sub_u32 v{vX3}, 0, v{vX3}
    s_sub_u32 s{sT0}, s{sTASK}, 384
    s_lshl_b32 s{sT0}, s{sT0}, 6
    s_add_u32 s{sT0}, s{sT0}, {509*512}
    s_mov_b32 s46, s14
    s_mov_b32 s47, s15
    K1_nokc:
    v_lshl_add_u32 v{vX1}, v{vX1}, 1, v{vX3}
    v_add_u32 v{vX1}, s{sT0}, v{vX1}
    """)
    for j in range(8):
        a(f"global_load_ushort v{vF+j}, v{vX1}, s[46:47] offset:{512*j}")
    a(f"""
    K1_notask:
    s_waitcnt lgkmcnt(0)
    v_add3_u32 v{sm}, v{c0}, v{c0+1}, v{c0+2}
    v_add_u32 v{sm}, v{sm}, v{c0+3}
    v_mov_b32 v{inc}, v{sm}
    """)
    scan(a, inc, "v_add_u32", 64)
    vRL, vRG0, vRG1, vBL, vBG = 20, 21, 22, 23, 24
    a(f"""
    v_sub_u32 v{o0}, v{inc}, v{sm}
    v_add_u32 v{o0+1}, v{o0}, v{c0}
    v_add_u32 v{o0+2}, v{o0+1}, v{c0+1}
    v_add_u32 v{o0+3}, v{o0+2}, v{c0+2}
    ds_write_b128 v{vX2}, {v(o0,4)} offset:{STARTS}
    ds_read_b32 v{vBK}, v{vBK} offset:{STARTS}
    v_subrev_u32 v{vX0}, 256, v0
    v_lshlrev_b32 v{vRL}, 4, v{vX0}
    s_mul_i32 s{sT0}, s2, {REC_STRIDE}
    s_add_u32 s{sT0}, s{sT0}, {WS_REC}
    v_add_u32 v{vRG0}, s{sT0}, v{vRL}
    v_add_u32 v{vRG1}, 10240, v{vRG0}
    v_cmp_gt_u32 vcc, 144, v{vX0}
    v_subrev_u32 v{vX0}, 384, v0
    v_lshrrev_b32 v{vX1}, 4, v{vX0}
    v_and_b32 v{vX0}, 15, v{vX0}
    v_mul_u32_u24 v{vBL}, 272, v{vX1}
    v_lshl_add_u32 v{vBL}, v{vX0}, 4, v{vBL}
    v_lshlrev_b32 v{vX1}, 9, v{vX1}
    v_lshl_add_u32 v{vBG}, v{vX0}, 4, v{vX1}
    s_mul_i32 s{sT0}, s{sRT}, {80*512}
    s_lshl_b32 s{sT1}, s{sHALF}, 8
    s_add_u32 s{sT0}, s{sT0}, s{sT1}
    s_add_u32 s{sT0}, s{sT0}, {WS_B}
    v_add_u32 v{vBG}, s{sT0}, v{vBG}
    s_cmp_ge_u32 s{sRT}, 125
    s_cselect_b32 s{sT2}, 99, 6
    s_mov_b64 s[48:49], vcc
    v_and_b32 v{vX1}, 1, v{vSRC}
    v_lshlrev_b32 v{vX1}, 4, v{vX1}
    s_waitcnt lgkmcnt(0)
    v_add_u32 v{vBK}, v{vBK}, v{vRK}
    v_mul_u32_u24 v{vBK}, 20, v{vBK}
    v_add_u32 v{vBK}, {REC}, v{vBK}
    """)

    def stage_records():
        if RECB == 2:
            a("s_waitcnt vmcnt(0)")
        a(f"""
        v_alignbit_b32 v{vPS}, v{vPS+1}, v{vPS}, v{vX1}
        v_lshrrev_b32 v{vPS+1}, v{vX1}, v{vPS+1}
        s_mov_b64 exec, s[{sEDGE}:{sEDGE+1}]
        ds_write2_b32 v{vBK}, v{vEA}, v{vEA+1} offset0:0 offset1:1
        ds_write2_b32 v{vBK}, v{vPS}, v{vDL} offset0:2 offset1:3
        ds_write_b32 v{vBK}, v{vPS+1} offset:16
        s_mov_b64 exec, -1
        s_cmp_lg_u32 s{sWAVE}, 6
        s_cbranch_scc1 K1_nooff
        v_lshl_or_b32 v{o0}, v{c0}, 16, v{o0}
        v_lshl_or_b32 v{o0+1}, v{c0+1}, 16, v{o0+1}
        v_lshl_or_b32 v{o0+2}, v{c0+2}, 16, v{o0+2}
        v_lshl_or_b32 v{o0+3}, v{c0+3}, 16, v{o0+3}
        s_lshl_b32 s{sT0}, s2, 10
        s_add_u32 s{sT0}, s{sT0}, {WS_OFF}
        v_add_u32 v{vX1}, s{sT0}, v{vX2}
        global_store_dwordx4 v{vX1}, {v(o0,4)}, s[20:21] {st}
        K1_nooff:
        s_cmp_ge_u32 s{sTASK}, 392
        s_cbranch_scc1 K1_staged
        s_cmp_ge_u32 s{sTASK}, 384
        s_cbranch_scc1 K1_kc
        v_lshl_or_b32 v{vF}, v{vF+1}, 16, v{vF}
        v_lshl_or_b32 v{vF+1}, v{vF+3}, 16, v{vF+2}
        v_lshl_or_b32 v{vF+2}, v{vF+5}, 16, v{vF+4}
        v_lshl_or_b32 v{vF+3}, v{vF+7}, 16, v{vF+6}
        s_lshl_b32 s{sT0}, s{sTASK}, 10
        s_add_u32 s{sT0}, s{sT0}, {WS_WF}
        v_add_u32 v{vX0}, s{sT0}, v{vX2}
        global_store_dwordx4 v{vX0}, {v(vF,4)}, s[20:21] {st}
        K1_staged:
        s_waitcnt lgkmcnt(0)
        """)

    def copy_records():
        a(f"""
        ds_read_b128 v[28:31], v{vRL} offset:{REC}
        s_cmp_ge_u32 s{sWAVE}, 7
        s_cbranch_scc1 K1_r1
        ds_read_b128 v[32:35], v{vRL} offset:{REC+10240}
        s_mov_b64 exec, s[48:49]
        s_waitcnt lgkmcnt(0)
        global_store_dwordx4 v{vRG1}, v[32:35], s[20:21] {st}
        s_mov_b64 exec, -1
        K1_r1:
        s_waitcnt lgkmcnt(0)
        global_store_dwordx4 v{vRG0}, v[28:31], s[20:21] {st}
        """)

    a("s_barrier")
    for r in range(3):
        if RECB == r + 2:
            stage_records()
        stamp(a, cfg, "k1", 3 + r)
        a("s_barrier")
        if r == 0 and RECB > 2:
            a("s_waitcnt vmcnt(0)")
        a(f"""
        s_cmp_lt_u32 s{sWAVE}, s{sT2}
        s_cbranch_scc1 K1_b{r}
        """)
        if r == 2:
            a(f"s_cmp_ge_u32 s{sWAVE}, 10\ns_cbranch_scc1 K1_b{r}")
        a(f"""
        ds_read_b128 {v(56+4*r,4)}, v{vBL} offset:{STG+32*272*r}
        s_waitcnt lgkmcnt(0)
        global_store_dwordx4 v{vBG}, {v(56+4*r,4)}, s[20:21] {st}
        v_add_u32 v{vBG}, 16384, v{vBG}
        K1_b{r}:
        """)
        if RECB == r + 2:
            copy_records()
    a("K1_done:")
    stamp(a, cfg, "k1", 6, wait=True)
    stamp_flush(a, cfg, "k1", 20)
    a(f"""
    K1_exit:
    s_endpgm
    K1_kc:
    v_cmp_gt_u32 vcc, 32, v{vL}
    v_mov_b32 v{vX1}, {fbits(LOG2E_NEG)}
    v_lshlrev_b32 v{vF+4}, 16, v{vF+4}
    v_lshlrev_b32 v{vF+5}, 16, v{vF+5}
    v_cndmask_b32_e64 v{vX0}, 0, v{vX1}, vcc
    v_lshlrev_b32 v{vF+6}, 16, v{vF+6}
    v_lshlrev_b32 v{vF+7}, 16, v{vF+7}
    v_mul_f32 v{vF+4}, v{vX1}, v{vF+4}
    v_mul_f32 v{vF+5}, v{vX0}, v{vF+5}
    v_mul_f32 v{vF+6}, v{vX0}, v{vF+6}
    v_mul_f32 v{vF+7}, v{vX0}, v{vF+7}
    v_cvt_pk_bf16_f32 v{vF}, v{vF+4}, v{vF+5}
    v_cvt_pk_bf16_f32 v{vF+1}, v{vF+6}, v{vF+7}
    s_sub_u32 s{sT0}, s{sTASK}, 384
    s_lshl_b32 s{sT0}, s{sT0}, 9
    s_add_u32 s{sT0}, s{sT0}, {WS_KC}
    v_lshl_add_u32 v{vX0}, v{vL}, 3, s{sT0}
    global_store_dwordx2 v{vX0}, {v(vF,2)}, s[20:21] {st}
    s_branch K1_staged
    """)

    a("K1_gemm2:")
    if cfg.get("cpf", 1):
        a(f"""
        s_getpc_b64 s[48:49]
        K1_pc:
        s_sub_u32 s48, s48, K1_pc-{K1_NAME}
        s_subb_u32 s49, s49, 0
        v_lshlrev_b32 v91, 7, v0
        v_cmp_gt_u32 vcc, (K2_crest-{K1_NAME})/128, v0
        s_and_saveexec_b64 s[50:51], vcc
        s_cbranch_execz K1_nopf
        global_load_dword v92, v91, s[48:49]
        K1_nopf:
        s_mov_b64 exec, s[50:51]
        """)
    a("s_barrier")
    for t in loads[PRE:]:
        a("\n".join(t))
    stamp(a, cfg, "k1", 9)
    a(f"""
    v_bfe_u32 v{vX0}, v{vL}, 2, 2
    v_lshrrev_b32 v{vX1}, 5, v{vL}
    v_lshl_add_u32 v{vX2}, v{vX1}, 3, v{vX0}
    v_lshlrev_b32 v{vWA}, 8, v{vX2}
    v_bfe_u32 v{vX2}, v{vL}, 4, 1
    v_bfe_u32 v{vX3}, v{vL}, 1, 1
    v_lshl_add_u32 v{vX2}, v{vX2}, 1, v{vX3}
    s_lshl_b32 s{sT2}, s{sWAVE}, 2
    v_add_u32 v{vX2}, s{sT2}, v{vX2}
    v_lshlrev_b32 v{vX0}, 2, v{vX0}
    v_xor_b32 v{vX2}, v{vX2}, v{vX0}
    v_lshl_add_u32 v{vWA}, v{vX2}, 4, v{vWA}
    v_and_b32 v{vX2}, 1, v{vL}
    v_lshl_add_u32 v{vWA}, v{vX2}, 3, v{vWA}
    v_add_u32 v{vWA}, {WT}, v{vWA}
    v_and_b32 v{vX0}, 31, v{vL}
    v_and_b32 v{vX2}, 15, v{vL}
    v_xor_b32 v{vX2}, v{vX2}, v{vX1}
    v_lshlrev_b32 v{vX2}, 4, v{vX2}
    v_lshl_add_u32 v{vX2}, v{vX0}, 9, v{vX2}
    v_add_u32 v{vHA}, {HT}, v{vX2}
    """)
    for k in range(1, 8):
        a(f"v_xor_b32 v{vHA+k}, {32*k}, v{vHA}")
    a(f"""
    v_mul_u32_u24 v{vX0}, 272, v{vX0}
    s_lshl_b32 s{sT2}, s{sWAVE}, 6
    s_add_u32 s{sT2}, s{sT2}, {STG}
    v_lshl_add_u32 v{vX1}, v{vX1}, 3, s{sT2}
    v_add_u32 v{vSB}, v{vX0}, v{vX1}
    s_mov_b32 s46, {fbits(LOG2E_NEG)}
    s_waitcnt vmcnt({HB1-4})
    """)
    stamp(a, cfg, "k1", 1)
    a("s_barrier")
    stamp(a, cfg, "k1", 2)
    for t in hl[HB1:]:
        a("\n".join(t))
    WF, HF, AC = 20, 84, [96, 112]
    lg = Lgkm(a)

    def rd(u):
        r, t = divmod(u, 16)
        if r == 0:
            lg.op(f"ds_read_b64_tr_b16 {v(WF+4*t,2)}, v{vWA} offset:{4096*t}", u)
            lg.op(f"ds_read_b64_tr_b16 {v(WF+4*t+2,2)}, v{vWA} offset:{4096*t+1024}", u)
        lg.op(f"ds_read_b128 {v(HF+4*(u%3),4)}, v{vHA+(t&7)} offset:{16384*r+256*(t>>3)}", u)

    def epi(r):
        A = AC[r & 1]
        out = []
        for q in range(4):
            for k in range(4):
                out.append(("v", f"v_mul_f32 v{A+4*q+k}, s46, v{A+4*q+k}"))
            out.append(("v", f"v_cvt_pk_bf16_f32 v{A+4*q}, v{A+4*q}, v{A+4*q+1}"))
            out.append(("v", f"v_cvt_pk_bf16_f32 v{A+4*q+1}, v{A+4*q+2}, v{A+4*q+3}"))
            out.append(("d", f"ds_write_b64 v{vSB}, {v(A+4*q,2)} offset:{32*272*r+16*q}"))
        return out
    rd(0)
    rd(1)
    pend = []
    for u in range(48):
        r, t = divmod(u, 16)
        lg.wait(u)
        A = AC[r & 1]
        a(f"v_mfma_f32_32x32x16_bf16 {v(A,16)}, {v(WF+4*t,4)}, {v(HF+4*(u%3),4)}, {'0' if t == 0 else v(A,16)}")
        if u == 13:
            a("s_waitcnt vmcnt(2)\ns_barrier")
        if u + 2 < 48:
            rd(u + 2)
        if r > 0 and t == 3:
            pend = epi(r - 1)
        for _ in range(4):
            if pend:
                k, txt = pend.pop(0)
                if k == "v":
                    a(txt)
                else:
                    lg.op(txt, ("w", r - 1))
        if r > 0 and t == 11:
            assert not pend
            lg.wait(("w", r - 1), extra="vmcnt(0)")
            stamp(a, cfg, "k1", 2 + r) if False else None
            a("s_barrier")
    a("s_nop 7\ns_nop 3\ns_mov_b32 exec_lo, 0xffff\ns_mov_b32 exec_hi, 0xffff")
    for k, txt in epi(2):
        a(txt)
    a("s_waitcnt lgkmcnt(0)")
    stamp(a, cfg, "k1", 5)
    a("s_barrier\ns_mov_b64 exec, -1\ns_branch K1_done")
    a("K1_idle:\ns_waitcnt lgkmcnt(0)\ns_barrier\ns_barrier\ns_barrier\ns_barrier\ns_barrier\ns_barrier\ns_branch K1_done")
    return dict(vgpr=128, sgpr=100 if cfg.get('stamps') else 64, lds=K1_LDS, threads=K1_THREADS, grid=256)
```

```python
from asmlib import Asm, v, s
from common import *

CNT, ZERO = 0, 64
PT = 1024
HT = 2048
MT = HT + 21120 + 512
OPS = MT + 21120
NBLK = 27
RING = OPS + NBLK * 3072
K2_LDS = RING + 32768
SLOW_R = (NBLK - 5) * 32 // 8
assert OPS % 256 == 0 and RING % 256 == 0 and K2_LDS <= 163840 and SLOW_R <= 128


class Alloc:
    def __init__(self, first):
        self.n = first

    def __call__(self, k=1):
        if k > 1 and self.n & 1:
            self.n += 1
        r = self.n
        self.n += k
        return r


def gen_k2(a: Asm, cfg):
    ost = cfg.get("out_store", "sc1")
    STR = cfg.get("s_tr", 1)
    w2s = cfg.get("w2s", [0, 4, 4, 4, 4])
    w1p = cfg.get("w1p", 0)
    w1q = cfg.get("w1q", 0)
    w1o = cfg.get("w1o", [4, 4, 4, 4, 0])
    w1y = cfg.get("w1y", w1o)
    assert sum(w1o) + w1p + w1q == 16 and sum(w1y) + w1p + w1q == 16 and sum(w2s) == 16
    w1oc = [w1p + w1q + sum(w1o[:i]) for i in range(6)]
    w1yc = [w1p + w1q + sum(w1y[:i]) for i in range(6)]
    w2c = [sum(w2s[:i]) for i in range(6)]
    prio = cfg.get("prio", 2)
    ZF0 = cfg.get("zf0", 2)
    sWS, sH, sG4 = 24, 28, 32
    sB, sW, sT0, sT1 = 36, 37, 38, 39
    sT2, sM, sQ, sG, sP = 40, 42, 43, 44, 45
    sJ0, sR, sLast, sTw, sTmax, sFirst, sAdone, sOver, sSp, sRing, sWO, sCO = range(46, 58)
    sV0, sV1, sC4, sL = 58, 60, 62, 64
    sFlip = 41
    sWX = 4
    sWC = 28
    al = Alloc(1)
    vL, vA, vSr, vR0, vR1, vMW, vHB, vHS, vOB, vOS, vW16, vCB, vCS, vST = (al() for _ in range(14))
    vVal, vPre, vInc, vLst = (al() for _ in range(4))
    PP = [al() for _ in range(4)]
    GI = [[al(2), al(2)], [al(2), al(2)]]
    P = [al(16), al(16)]
    T = al(16)
    X = al(16)
    M, ACC, BF, FA, S, FB = al(8), al(16), al(8), al(4), al(8), al(4)
    AP, ILO, IHI, WX, CB, CS, WB = al(8), al(4), al(4), al(8), al(16), al(4), al(64)
    assert P[0] + 16 == P[1] and T + 16 == X and CB + 16 == CS and BF + 8 == FA and al.n <= 256, al.n
    HR, vPOS = BF, S
    WC, HCB, HCS = X + 4, X + 8, X + 12
    x0, x1, x2, x3, x4, x5, x6, x7 = range(X, X + 8)
    vOne = X + 15

    def zero_fill(part=None):
        if part in (None, 0):
            a(f"""
            v_mov_b64 {v(T,2)}, 0
            v_mov_b64 {v(T+2,2)}, 0
            v_lshlrev_b32 v{T+4}, 4, v0
            v_add_u32 v{T+5}, {OPS}, v{T+4}
            v_add_u32 v{T+6}, {OPS+65536}, v{T+4}
            v_lshlrev_b32 v{T+7}, 3, v0
            ds_write_b64 v{T+7}, {v(T,2)} offset:{MT}
            """)
            lab = a.uid("K2_nolow")
            a(f"s_cmp_lg_u32 s{sW}, 0\ns_cbranch_scc1 {lab}\nds_write_b128 v{T+4}, {v(T,4)}\n{lab}:")
        rr = range(11) if part is None else (range(ZF0) if part == 0 else range(ZF0, 11))
        for r in rr:
            a(f"ds_write_b128 v{T+5 if r < 8 else T+6}, {v(T,4)} offset:{8192*(r&7)}")

    def wload(mtx, lo, hi):
        for t in range(lo, hi):
            if t == lo or t % 4 == 0:
                a(f"s_add_u32 s{sSp}, s{sWO}, {mtx*131072 + (t//4)*4096}")
            a(f"buffer_load_dwordx4 {v(WB+4*t,4)}, v{vW16}, s[{sWS}:{sWS+3}], s{sSp} offen offset:{1024*(t%4)}")

    def w1load(i, wait=None, guard=True):
        done = a.uid("K2_w1d")
        if guard:
            a(f"s_cmp_lg_u32 s{sAdone}, 0\ns_cbranch_scc1 {done}")
        if w1o == w1y:
            wload(0, w1oc[i], w1oc[i + 1])
            if wait is not None:
                a(f"s_waitcnt vmcnt({wait + w1oc[i+1] - w1p})")
        else:
            yl = a.uid("K2_w1y")
            a(f"s_cmp_ge_u32 s{sW}, 4\ns_cbranch_scc1 {yl}")
            wload(0, w1oc[i], w1oc[i + 1])
            if wait is not None:
                a(f"s_waitcnt vmcnt({wait + w1oc[i+1] - w1p})")
            a(f"s_branch {done}\n{yl}:")
            wload(0, w1yc[i], w1yc[i + 1])
            if wait is not None:
                a(f"s_waitcnt vmcnt({wait + w1yc[i+1] - w1p})")
        a(f"{done}:")

    def gemm40(accB, accS, w_is_a, fr, init0, waits=None, ahead=3):
        def rd(t):
            b = fr + 8 * (t % (ahead + 1))
            a(f"ds_read_b128 {v(b,4)}, v{vHB} offset:{32*t}")
            a(f"ds_read_b128 {v(b+4,4)}, v{vHS} offset:{32*t}")

        def wait(t, issued):
            left = 2 * (issued - 1 - t)
            if waits and t in waits:
                a(f"s_waitcnt vmcnt({waits[t]}) lgkmcnt({left})")
            else:
                a(f"s_waitcnt lgkmcnt({left})")
        for t in range(ahead):
            rd(t)
        wait(0, ahead)
        for t in range(16):
            b = fr + 8 * (t % (ahead + 1))
            w = v(WB + 4 * t, 4)
            cb = "0" if init0 and t == 0 else v(accB, 16)
            cs = "0" if init0 and t == 0 else v(accS, 4)
            if w_is_a:
                big = f"v_mfma_f32_32x32x16_bf16 {v(accB,16)}, {w}, {v(b,4)}, {cb}"
                small = f"v_mfma_f32_16x16x32_bf16 {v(accS,4)}, {w}, {v(b+4,4)}, {cs}"
            else:
                big = f"v_mfma_f32_32x32x16_bf16 {v(accB,16)}, {v(b,4)}, {w}, {cb}"
                small = f"v_mfma_f32_16x16x32_bf16 {v(accS,4)}, {v(b+4,4)}, {w}, {cs}"
            a(big)
            if t + ahead < 16:
                rd(t + ahead)
            if t < 15:
                wait(t + 1, min(16, t + ahead + 1))
            a(small)

    def src_read(slot, blk):
        return [f"ds_read_u16 v{GI[slot][0]}, v{vSr} offset:{3072*blk}",
                f"ds_read_u16 v{GI[slot][1]}, v{vSr} offset:{3072*blk+256}"]

    def dma(slot):
        if cfg.get("x_nodma"):
            return []
        return [f"buffer_load_dwordx4 {v(GI[slot][i],2)}, s[{sG4}:{sG4+3}], 0 idxen offen offset:{2048*slot+1024*i} {cfg.get('g_flags','')} lds"
                for i in range(2)]

    def setprio(old, young):
        if prio:
            l1, l2 = a.uid("K2_py"), a.uid("K2_pd")
            if young is None:
                a(f"s_cmp_ge_u32 s{sW}, 4\ns_cbranch_scc1 {l1}\ns_setprio {old}\n{l1}:")
            else:
                a(f"s_setprio {old}\ns_cmp_lt_u32 s{sW}, 4\ns_cbranch_scc1 {l1}\ns_setprio {young}\n{l1}:")

    nq_ = 1 if cfg.get("l2pf2", 0) == 1 else 0

    def l2pf():
        a(f"""
        s_lshr_b32 s{sT0}, s2, 3
        s_lshl_b32 s{sT0}, s{sT0}, 3
        s_add_u32 s{sT0}, s{sT0}, s{sW}
        s_lshl_b32 s{sT0}, s{sT0}, 9
        s_add_u32 s{sT0}, s{sT0}, {WS_WF}
        v_lshrrev_b32 v{x0}, 2, v{vL}
        v_and_b32 v{x1}, 3, v{vL}
        v_lshlrev_b32 v{x0}, 17, v{x0}
        v_lshl_add_u32 v{x0}, v{x1}, 7, v{x0}
        s_mov_b64 exec, 0xfff
        buffer_load_dword v{PP[0]}, v{x0}, s[{sWS}:{sWS+3}], s{sT0} offen
        s_mov_b64 exec, -1
        """)

    a.label(K2_NAME)
    a(f"""
    s_and_b32 s{sT0}, s2, 7
    s_lshr_b32 s{sT1}, s2, 3
    s_lshl_b32 s{sT0}, s{sT0}, 5
    s_add_u32 s{sB}, s{sT0}, s{sT1}
    s_cmp_ge_u32 s2, 256
    s_cbranch_scc1 K2_exit
    s_cmp_ge_u32 s{sB}, 250
    s_cbranch_scc1 K2_exit
    s_load_dwordx2 s[{sWS}:{sWS+1}], s[0:1], 80
    s_load_dwordx2 s[{sH}:{sH+1}], s[0:1], 0
    s_load_dwordx2 s[22:23], s[0:1], 48
    s_load_dwordx2 s[20:21], s[0:1], 64
    s_load_dwordx2 s[66:67], s[0:1], 8
    """)
    stamp(a, cfg, "k2", 0)
    if cfg.get("prio0", 1):
        a("s_setprio 3")
    a(f"""
    v_lshrrev_b32 v{x0}, 6, v0
    v_and_b32 v{vL}, 63, v0
    v_readfirstlane_b32 s{sW}, v{x0}
    s_mov_b32 s{sWS+2}, {WS_END}
    s_mov_b32 s{sWS+3}, 0x20000
    s_mov_b32 s{sH+2}, 5120000
    s_mov_b32 s{sH+3}, 0x20000
    s_lshl_b32 s{sT0}, s{sW}, 15
    s_lshl_b32 s{sT1}, s{sB}, 2
    s_add_u32 s{sT0}, s{sT0}, s{sT1}
    s_add_u32 s{sT0}, s{sT0}, {WS_OFF}
    v_lshl_add_u32 v{x4}, v{vL}, 10, s{sT0}
    v_mov_b32 v{vInc}, 0
    """)
    zero_fill(0)
    a(f"""
    s_mul_i32 s{sT1}, s{sB}, 20480
    s_lshl_b32 s{sT2}, s{sW}, 6
    s_waitcnt lgkmcnt(0)
    s_mov_b32 exec_hi, 0
    buffer_load_dword v{vInc}, v{x4}, s[{sWS}:{sWS+3}], 0 offen
    s_mov_b32 exec_hi, -1
    s_add_u32 s22, s22, s{sT2}
    s_addc_u32 s23, s23, 0
    s_load_dwordx16 s[{sWX}:{sWX+15}], s[22:23], 0
    """)
    npf = 0
    if cfg.get("l2pf2", 0) == 2:
        npf = 1
        l2pf()
    if cfg.get("bar0", 0):
        a("s_barrier")
    a(f"""
    s_add_u32 s{sT0}, s{sT1}, 8192
    s_add_u32 s{sT2}, s{sT1}, 16384
    s_mov_b32 s{sSp}, {WS_KC}
    buffer_load_dwordx2 {v(FB+2,2)}, v{T+7}, s[{sWS}:{sWS+3}], s{sSp} offen
    buffer_load_dwordx4 {v(P[0],4)}, v{T+4}, s[{sH}:{sH+3}], s{sT1} offen {cfg.get('k2_fh','')}
    buffer_load_dwordx4 {v(P[0]+4,4)}, v{T+4}, s[{sH}:{sH+3}], s{sT0} offen {cfg.get('k2_fh','')}
    buffer_load_dwordx4 {v(P[0]+8,4)}, v{T+4}, s[{sH}:{sH+3}], s{sT2} offen {cfg.get('k2_fh','')}
    s_mul_i32 s{sT0}, s{sB}, 240
    v_min_u32 v{x0}, 119, v0
    v_lshl_add_u32 v{x0}, v{x0}, 1, s{sT0}
    global_load_ushort v{P[0]+12}, v{x0}, s[66:67]
    """)
    a(f"""
    s_mov_b32 s{sJ0}, 0
    s_mov_b32 s{sR}, 128
    s_mov_b32 s{sLast}, 1
    s_mov_b32 s{sFirst}, 1
    s_mov_b32 s{sAdone}, 0
    s_lshl_b32 s{sT0}, s{sW}, 5
    v_add_u32 v{x4}, s{sT0}, v{vL}
    v_mul_u32_u24 v{x4}, {REC_STRIDE}, v{x4}
    v_add_u32 v{x7}, {WS_REC}, v{x4}
    s_lshl_b32 s{sT0}, s{sW}, 9
    s_add_u32 s{sT0}, s{sT0}, {MT}
    v_mov_b32 v{vLst}, s{sT0}
    v_lshlrev_b32 v{vW16}, 4, v{vL}
    s_lshl_b32 s{sWO}, s{sW}, 14
    s_add_u32 s{sWO}, s{sWO}, {WS_WF}
    """)

    def lane_consts():
        act = sum(1 << l for l in range(64) if (((l >> 2) ^ (l >> 4)) & 1) == 1)
        a(f"""
        s_mov_b32 s{sC4}, 0x11111111
        s_mov_b32 s{sC4+1}, 0x11111111
        s_mov_b32 s{sL}, {fbits(LOG2E_NEG)}
        s_lshl_b32 s{sRing}, s{sW}, 12
        s_add_u32 s{sRing}, s{sRing}, {RING}
        s_mov_b32 m0, s{sRing}
        s_add_u32 s{sG4}, s{sWS}, {WS_B-3072}
        s_addc_u32 s{sG4+1}, s{sWS+1}, 0
        s_or_b32 s{sG4+1}, s{sG4+1}, 0x2000000
        s_mov_b32 s{sG4+2}, 10000
        s_mov_b32 s{sG4+3}, 0x20000
        s_lshl_b32 s{sT2}, s{sW}, 6
        v_lshrrev_b32 v{x3}, 4, v{vL}
        v_xor_b32 v{x0}, v{x3}, v{vL}
        v_and_b32 v{x0}, 3, v{x0}
        v_lshl_add_u32 v{GI[1][1]+1}, v{x0}, 4, s{sT2}
        v_add_u32 v{GI[1][0]+1}, 1024, v{GI[1][1]+1}
        v_add_u32 v{GI[0][1]+1}, 2048, v{GI[1][1]+1}
        v_add_u32 v{GI[0][0]+1}, 3072, v{GI[1][1]+1}
        v_and_b32 v{x0}, 31, v{vL}
        v_lshrrev_b32 v{x1}, 5, v{vL}
        v_bfe_u32 v{x2}, v{vL}, 2, 2
        v_xor_b32 v{x2}, v{x2}, v{x1}
        v_lshl_add_u32 v{x2}, v{x2}, 4, s{sRing}
        v_lshl_add_u32 v{vR0}, v{x0}, 6, v{x2}
        v_xor_b32 v{vR1}, 32, v{vR0}
        s_add_u32 s{sT0}, s{sT2}, {HT}
        v_lshl_add_u32 v{x4}, v{x1}, 3, s{sT0}
        v_lshrrev_b32 v{x2}, 2, v{x0}
        v_mul_u32_u24 v{x2}, 528, v{x2}
        v_add_u32 v{x2}, v{x2}, v{x4}
        v_add_u32 v{vMW}, {MT-HT}, v{x2}
        v_mul_u32_u24 v{x0}, 528, v{x0}
        v_add_u32 v{vOB}, v{x0}, v{x4}
        v_lshlrev_b32 v{x1}, 4, v{x1}
        v_add_u32 v{x1}, {HT}, v{x1}
        v_add_u32 v{vHB}, v{x0}, v{x1}
        v_lshrrev_b32 v{x0}, 1, v{vL}
        v_and_b32 v{x0}, 4, v{x0}
        v_and_or_b32 v{x0}, v{vL}, 3, v{x0}
        v_mul_u32_u24 v{x0}, 528, v{x0}
        v_add_u32 v{x0}, {32*528}, v{x0}
        v_add_u32 v{vHS}, v{x0}, v{x1}
        v_lshl_add_u32 v{x0}, v{x3}, 3, v{x0}
        v_and_b32 v{x2}, 4, v{vL}
        v_lshl_add_u32 v{x0}, v{x2}, 3, v{x0}
        v_add_u32 v{vOS}, s{sT0}, v{x0}
        v_and_b32 v{x0}, 3, v{vL}
        v_lshlrev_b32 v{x0}, 4, v{x0}
        v_mov_b32 v{x2}, 0x3f80
        v_mov_b32 v{x3}, 0
        v_lshlrev_b64 {v(x2,2)}, v{x0}, {v(x2,2)}
        v_mov_b64 {v(ILO,2)}, 0
        v_mov_b64 {v(ILO+2,2)}, 0
        v_mov_b64 {v(IHI,2)}, 0
        v_mov_b64 {v(IHI+2,2)}, 0
        """)
        for k, reg in enumerate((ILO, ILO + 2, IHI, IHI + 2)):
            lo = 0xf << (4 * (k & 1) + 16 * (k >> 1))
            a(f"s_mov_b32 exec_lo, {hex(lo)}\ns_mov_b32 exec_hi, {hex(lo << 8)}\nv_mov_b64 {v(reg,2)}, {v(x2,2)}")
        a(f"""
        s_mov_b32 exec_lo, {hex(act & 0xffffffff)}
        s_mov_b32 exec_hi, {hex(act >> 32)}
        v_mov_b32 v{vHS}, {ZERO}
        s_mov_b64 exec, -1
        """)
    wload(0, 0, w1p)
    if cfg.get("consts_early", 1):
        lane_consts()
    a(f"s_waitcnt vmcnt({5+npf+w1p})")
    stamp(a, cfg, "k2", 1)
    a(f"""
    v_and_b32 v{x0}, 0xffff, v{vInc}
    v_lshrrev_b32 v{vInc}, 16, v{vInc}
    v_mov_b32 v{vPre}, v{vInc}
    """)
    scan(a, vInc, "v_add_u32", 32)
    a(f"""
    v_sub_u32 v{vPre}, v{vInc}, v{vPre}
    v_readlane_b32 s{sTw}, v{vInc}, 31
    v_sub_u32 v{x0}, v{x0}, v{vPre}
    v_mad_i32_i24 v{vVal}, v{x0}, 20, v{x7}
    """)
    EARLY_A = cfg.get("early_a", 0)

    def a_prime():
        if EARLY_A:
            waits = {t: (w1q + 4 + nq_ + (w1p - 1 - t) if t < w1p else 15 - t) for t in range(16)}
            AB, AS, FRG = P[0], ACC, T
        else:
            lastb = min(w1oc[4], w1yc[4])
            waits = {t: (19 - t if t < lastb else 15 - t) for t in range(16)}
            AB, AS, FRG = P[0], ACC, T
        gemm40(AB, AS, False, FRG, True, waits=waits)
        a(f"s_mov_b32 s{sAdone}, 1")
        for k in range(10):
            a(f"v_mov_b64 {v(CB+2*k,2)}, 0")
        for k in range(8):
            a(f"v_pk_mul_f32 {v(AB+2*k,2)}, {v(AB+2*k,2)}, s[{sL}:{sL+1}] op_sel_hi:[1,0]")
        for k in range(2):
            a(f"v_pk_mul_f32 {v(AS+2*k,2)}, {v(AS+2*k,2)}, s[{sL}:{sL+1}] op_sel_hi:[1,0]")
        for k in range(8):
            a(f"v_cvt_pk_bf16_f32 v{FB+k if k < 2 else AP+k-2}, v{AB+2*k}, v{AB+2*k+1}")
        for k in range(2):
            a(f"v_cvt_pk_bf16_f32 v{AP+6+k}, v{AS+2*k}, v{AS+2*k+1}")

    RA, RB = P[1], P[1] + 8
    a(f"""
    K2_expand:
    s_add_u32 s{sT0}, s{sJ0}, s{sR}
    v_cmp_lt_u32 vcc, v{vPre}, v{vInc}
    v_cmp_lt_u32 s[{sV0}:{sV0+1}], s{sJ0}, v{vInc}
    v_cmp_gt_u32 s[{sV1}:{sV1+1}], s{sT0}, v{vPre}
    v_subrev_u32 v{x0}, s{sJ0}, v{vPre}
    v_max_i32 v{x0}, 0, v{x0}
    v_lshl_add_u32 v{x0}, v{x0}, 2, v{vLst}
    v_lshl_add_u32 v{x1}, v{vL}, 2, v{vLst}
    s_and_b64 vcc, vcc, s[{sV0}:{sV0+1}]
    s_and_b64 exec, vcc, s[{sV1}:{sV1+1}]
    ds_write_b32 v{x0}, v{vVal}
    s_mov_b64 exec, -1
    ds_read2st64_b32 {v(x2,2)}, v{x1} offset0:0 offset1:1
    s_sub_i32 s{sT1}, s{sTw}, s{sJ0}
    s_max_i32 s{sT1}, s{sT1}, 0
    s_min_u32 s{sT1}, s{sT1}, s{sR}
    v_add_u32 v{x4}, 64, v{vL}
    v_cmp_gt_u32 s[{sV0}:{sV0+1}], s{sT1}, v{vL}
    v_cmp_gt_u32 s[{sV1}:{sV1+1}], s{sT1}, v{x4}
    v_add_u32 v{x4}, s{sJ0}, v{vL}
    v_mul_u32_u24 v{x4}, 20, v{x4}
    v_mov_b32 v{x5}, 0x7fffff00
    s_waitcnt lgkmcnt(0)
    """)
    scan2(a, x2, x3, "v_max_u32")
    a(f"""
    v_readlane_b32 s{sT0}, v{x2}, 63
    v_add_u32 v{x2}, v{x2}, v{x4}
    v_add_u32 v{x4}, {64*20}, v{x4}
    v_max_u32 v{x3}, s{sT0}, v{x3}
    v_add_u32 v{x3}, v{x3}, v{x4}
    v_cndmask_b32_e64 v{x2}, v{x5}, v{x2}, s[{sV0}:{sV0+1}]
    v_cndmask_b32_e64 v{x3}, v{x5}, v{x3}, s[{sV1}:{sV1+1}]
    buffer_load_dwordx4 {v(RA,4)}, v{x2}, s[{sWS}:{sWS+3}], 0 offen
    buffer_load_dwordx4 {v(RB,4)}, v{x3}, s[{sWS}:{sWS+3}], 0 offen
    buffer_load_dword v{RA+4}, v{x2}, s[{sWS}:{sWS+3}], 0 offen offset:16
    buffer_load_dword v{RB+4}, v{x3}, s[{sWS}:{sWS+3}], 0 offen offset:16
    s_cmp_eq_u32 s{sFirst}, 0
    s_cbranch_scc1 K2_again1
    """)
    stamp(a, cfg, "k2", 2)
    a("s_setprio 0")
    if cfg.get("l2pf2", 0) == 1:
        l2pf()
    pass
    zero_fill(1)
    if cfg.get("barq", 0):
        a("s_barrier")
    wload(0, w1p, w1p + w1q)
    a(f"""
    s_cmp_lg_u32 s{sW}, 7
    s_cbranch_scc1 K2_nopad
    v_min_u32 v{x0}, 39, v{vL}
    v_sub_u32 v{x1}, v{vL}, v{x0}
    v_mul_u32_u24 v{x0}, 528, v{x0}
    v_lshl_add_u32 v{x0}, v{x1}, 4, v{x0}
    ds_write_b128 v{x0}, {v(T,4)} offset:{HT+512}
    K2_nopad:
    """)
    a(f"""
    v_lshrrev_b32 v{x0}, 5, v0
    v_and_b32 v{x1}, 31, v0
    v_mul_u32_u24 v{x0}, 528, v{x0}
    v_lshl_add_u32 v{x0}, v{x1}, 4, v{x0}
    s_waitcnt vmcnt({4+w1p+w1q+nq_})
    ds_write_b128 v{x0}, {v(P[0],4)} offset:{HT}
    ds_write_b128 v{x0}, {v(P[0]+4,4)} offset:{HT+8448}
    s_cmp_ge_u32 s{sW}, 4
    s_cbranch_scc1 K2_h2
    ds_write_b128 v{x0}, {v(P[0]+8,4)} offset:{HT+2*8448}
    s_cmp_ge_u32 s{sW}, 2
    s_cbranch_scc1 K2_h2
    v_min_u32 v{x0}, 119, v0
    v_mul_u32_u24 v{x1}, 171, v{x0}
    v_lshrrev_b32 v{x1}, 9, v{x1}
    v_add_lshl_u32 v{x0}, v{x0}, v{x1}, 2
    v_lshlrev_b32 v{x1}, 16, v{P[0]+12}
    ds_write_b32 v{x0}, v{x1} offset:{PT}
    K2_h2:
    """)
    if not cfg.get("consts_early", 1):
        lane_consts()
    for k in range(8):
        a(f"v_mov_b32 v{WX+k}, s{sWX + 4*(k>>1) + (k&1)}")
    a("s_mov_b32 exec_lo, 0")
    for k in range(8):
        a(f"v_mov_b32 v{WX+k}, s{sWX + 4*(k>>1) + 2 + (k&1)}")
    a(f"""
    s_mov_b32 exec_lo, -1
    s_add_u32 s{sWC}, s{sWS}, s{sWO}
    s_addc_u32 s{sWC+1}, s{sWS+1}, 0
    s_add_u32 s{sWC}, s{sWC}, 131072
    s_addc_u32 s{sWC+1}, s{sWC+1}, 0
    """)
    if EARLY_A:
        assert w1p + w1q == 16
        a("s_waitcnt lgkmcnt(0)\ns_barrier")
        a_prime()
        a("s_waitcnt vmcnt(0)")
    a(f"""
    K2_back1:
    v_mov_b32 v{vOne}, 0x3f80
    v_mov_b32 v{x6}, 1
    v_mov_b32 v{x7}, s{sTw}
    v_mov_b32 v{x5}, {CNT+24}
    v_min_u32 v{x4}, 7, v{vL}
    v_lshlrev_b32 v{x4}, 2, v{x4}
    s_waitcnt lgkmcnt(0)
    s_barrier
    """)
    a(f"""
    s_mov_b64 exec, 1
    ds_max_u32 v{x5}, v{x7}
    s_mov_b64 exec, -1
    """)
    w1load(0, wait=2+nq_)
    stamp(a, cfg, "k2", 3)
    for R, sv in ((RA, sV0), (RB, sV1)):
        a(f"""
        v_lshrrev_b32 v{R+6}, 1, v{R+3}
        v_and_b32 v{R+6}, 0x1c, v{R+6}
        v_and_b32 v{x0}, 63, v{R+3}
        s_mov_b64 exec, s[{sv}:{sv+1}]
        ds_add_rtn_u32 v{R+7}, v{R+6}, v{x6} offset:{CNT}
        s_mov_b64 exec, -1
        v_lshlrev_b32 v{x0}, 4, v{x0}
        ds_read_b128 {v(T if R == RA else T+4,4)}, v{x0} offset:{PT}
        """)
    npg = 0
    if cfg.get("pfg", 0):
        rounds = ((RA, sV0), (RB, sV1)) if cfg.get("pfg_b", 1) else ((RA, sV0),)
        for R, sv in rounds:
            a(f"""
            v_cmp_gt_u32 vcc, {4*cfg.get('pfg')}, v{R+6}
            v_lshrrev_b32 v{x2}, 16, v{R+3}
            v_mov_b32 v{x3}, 0x3fff
            s_and_b64 vcc, vcc, s[{sv}:{sv+1}]
            v_cndmask_b32_e64 v{x2}, v{x3}, v{x2}, vcc
            v_mov_b32 v{x3}, 3072
            """)
            for k in range(4):
                a(f"buffer_load_dword v{PP[k]}, {v(x2,2)}, s[{sG4}:{sG4+3}], 0 idxen offen offset:{128*k} {cfg.get('pfg_flags','')}")
                npg += 1
    a(f"""
    v_lshlrev_b32 v{x6}, 1, v{vL}
    v_add_u32 v{x6}, 8, v{x6}
    v_cmp_gt_u32 vcc, 5, v{vL}
    s_waitcnt lgkmcnt(0)
    s_barrier
    """)
    if cfg.get("st_place"): stamp(a, cfg, "k2", 9)
    a(f"ds_read_b32 v{x0}, v{x4} offset:{CNT}")
    w1load(1, wait=nq_+npg)
    a(f"""
    s_waitcnt lgkmcnt(0)
    v_readlane_b32 s{sT1}, v{x0}, 6
    v_max_u32 v{x1}, 1, v{x0}
    v_add_u32 v{x2}, -1, v{x1}
    v_lshrrev_b32 v{x1}, 5, v{x2}
    v_add_u32 v{x1}, 1, v{x1}
    v_bfe_u32 v{x2}, v{x2}, 3, 2
    v_lshl_or_b32 v{x2}, v{x2}, v{x6}, v{x1}
    v_cndmask_b32_e64 v{x2}, 0, v{x2}, vcc
    """)
    HI = "0xffff0000"
    fill = []
    for R, D, Z in ((RA, T, P[0]), (RB, T + 4, P[0] + 4)):
        t0, t1, t2 = T + 8, T + 9, T + 10
        fill += f"""v_lshlrev_b32 v{t0}, 16, v{R+2}
        v_and_b32 v{t1}, {HI}, v{R+2}
        v_lshlrev_b32 v{t2}, 16, v{R+4}
        v_sub_f32 v{t0}, v{D}, v{t0}
        v_sub_f32 v{t1}, v{D+1}, v{t1}
        v_sub_f32 v{t2}, v{D+2}, v{t2}
        v_cvt_pk_bf16_f32 v{R+4}, 1.0, v{t0}
        v_cvt_pk_bf16_f32 v{R+5}, v{t1}, v{t2}
        v_and_b32 v{t0}, {HI}, v{R+4}
        v_lshlrev_b32 v{t1}, 16, v{R+5}
        v_and_b32 v{t2}, {HI}, v{R+5}
        v_mul_f32 v{t0}, v{t0}, v{t0}
        v_mul_f32 v{t1}, v{t1}, v{t1}
        v_mul_f32 v{t2}, v{t2}, v{t2}
        v_cvt_pk_bf16_f32 v{t0}, v{t0}, v{t1}
        v_cvt_pk_bf16_f32 v{t2}, v{t2}, v{t2}
        v_lshlrev_b32 v{t1}, 16, v{t0}
        v_and_b32 v{t0}, {HI}, v{t0}
        v_lshlrev_b32 v{t2}, 16, v{t2}
        v_add_f32 v{t1}, v{t1}, v{t0}
        v_add_f32 v{t1}, v{t1}, v{t2}
        v_cvt_pk_bf16_f32 v{R+2}, v{t1}, 0
        v_lshrrev_b32 v{t0}, 5, v{R+7}
        v_mul_u32_u24 v{t0}, 3072, v{t0}
        v_and_b32 v{t1}, 31, v{R+7}
        v_lshl_add_u32 v{Z}, v{t1}, 4, v{t0}
        v_lshl_add_u32 v{Z+1}, v{t1}, 6, v{t0}
        v_and_b32 v{t1}, 7, v{R+3}
        v_lshl_add_u32 v{Z+1}, v{t1}, 3, v{Z+1}
        v_and_b32 v{t1}, 4, v{R+3}
        v_lshl_add_u32 v{Z+2}, v{t1}, 7, v{Z}
        v_and_b32 v{t1}, 3, v{R+3}
        v_lshl_add_u32 v{Z+2}, v{t1}, 1, v{Z+2}""".split("\n")

    def pad(n):
        for _ in range(n):
            a(fill.pop(0))
    for sh in (1, 2, 4):
        pad(2)
        a(f"v_add_u32_dpp v{x2}, v{x2}, v{x2} row_shr:{sh} row_mask:0xf bank_mask:0xf bound_ctrl:1")
    pad(1)
    a(f"""
    v_readlane_b32 s{sQ}, v{x2}, 4
    v_and_b32 v{x2}, 0xff, v{x2}
    v_sub_u32 v{x3}, v{x2}, v{x1}
    v_mul_u32_u24 v{x3}, 3072, v{x3}
    v_add_u32 v{x3}, {OPS}, v{x3}
    ds_bpermute_b32 v{RA+6}, v{RA+6}, v{x3}
    ds_bpermute_b32 v{RB+6}, v{RB+6}, v{x3}
    v_sub_u32 v{x2}, 32, v{x2}
    v_lshlrev_b32 v{x2}, v{x2}, 1
    v_cndmask_b32_e64 v{x2}, 0, v{x2}, vcc
    s_and_b32 s{sT0}, s{sQ}, 0xff
    s_lshr_b32 s{sQ}, s{sQ}, 8
    """)
    for sh in (1, 2, 4):
        a(f"v_add_u32_dpp v{x2}, v{x2}, v{x2} row_shr:{sh} row_mask:0xf bank_mask:0xf bound_ctrl:1")
        pad(2)
    a(f"""
    v_readlane_b32 s{sM}, v{x2}, 4
    s_cmp_gt_u32 s{sT0}, {NBLK}
    s_cselect_b32 s{sOver}, 1, 0
    s_cmp_eq_u32 s{sFirst}, 0
    s_cbranch_scc1 K2_notfirst
    s_mov_b32 s{sTmax}, s{sT1}
    s_cmp_gt_u32 s{sT1}, 128
    s_cselect_b32 s{sOver}, 1, s{sOver}
    K2_notfirst:
    s_mov_b32 s{sFirst}, 0
    """)
    if cfg.get("st_place"): stamp(a, cfg, "k2", 10)
    w1load(2)
    a(f"""
    s_cmp_lg_u32 s{sOver}, 0
    s_cbranch_scc1 K2_over1
    """)
    half = len(fill) - 33
    for R, sv, Z in ((RA, sV0, P[0]), (RB, sV1, P[0] + 4)):
        pad(half if R == RA else len(fill))
        if R == RA:
            a("s_waitcnt lgkmcnt(0)")
        a(f"""
        v_add_u32 v{Z}, v{Z}, v{R+6}
        v_add_u32 v{Z+1}, v{Z+1}, v{R+6}
        v_add_u32 v{Z+2}, v{Z+2}, v{R+6}
        s_mov_b64 exec, s[{sv}:{sv+1}]
        ds_write_b64 v{Z}, {v(R+2,2)} offset:520
        ds_write_b64 v{Z}, {v(R,2)} offset:8
        ds_write_b64 v{Z+1}, {v(R+4,2)} offset:1024
        ds_write_b16 v{Z+2}, v{vOne}
        s_mov_b64 exec, -1
        """)
    a(f"""
    v_add_u32 v{vA}, {OPS}, v{vW16}
    v_lshrrev_b32 v{x0}, 2, v{vL}
    v_lshlrev_b32 v{x1}, 4, v{x0}
    v_add_u32 v{vSr}, {OPS+512+14}, v{x1}
    v_and_b32 v{x1}, 3, v{x0}
    v_lshlrev_b32 v{x1}, 6, v{x1}
    v_and_b32 v{x2}, 4, v{x0}
    v_lshl_add_u32 v{x1}, v{x2}, 3, v{x1}
    v_and_b32 v{x2}, 8, v{x0}
    v_lshl_add_u32 v{x1}, v{x2}, 5, v{x1}
    v_and_b32 v{x2}, 3, v{vL}
    v_lshl_add_u32 v{x1}, v{x2}, 3, v{x1}
    v_add_u32 v{vST}, {OPS+1024}, v{x1}
    """)
    if cfg.get("st_place"): stamp(a, cfg, "k2", 11)
    w1load(3)
    a("s_waitcnt lgkmcnt(0)\ns_barrier")
    stamp(a, cfg, "k2", 4)
    if cfg.get("x_bench"):
        a(f"s_mov_b32 s{sM}, {hex(0x1f << (32-27))}\ns_mov_b32 s{sQ}, 0x3ff")
    a("\n".join(src_read(0, 0) + src_read(1, 1)))
    a("s_waitcnt lgkmcnt(2)")
    a("\n".join(dma(0)))
    a("s_waitcnt lgkmcnt(0)")
    a("\n".join(dma(1)))
    if STR == 2:
        a(f"s_mul_i32 s{sT0}, s{sW}, 3072\nv_add_u32 v{vST}, s{sT0}, v{vST}\nv_add_u32 v{x0}, s{sT0}, v{vA}")
        for j in range(4):
            if j == 3:
                a(f"s_cmp_ge_u32 s{sW}, {NBLK-24}\ns_cbranch_scc1 K2_tr3\nv_add_u32 v{vST}, {3*24576}, v{vST}\nv_add_u32 v{x0}, {3*24576}, v{x0}")
            off = 24576 * j if j < 3 else 0
            B = P[1] + 8 * (j & 1)
            for k in range(4):
                a(f"ds_read_b64_tr_b16 {v(B+2*k,2)}, v{vST} offset:{off+512*k}")
            a("s_waitcnt lgkmcnt(0)")
            for k in range(2):
                a(f"ds_write_b128 v{x0}, {v(B+4*k,4)} offset:{off+1024+1024*k}")
        a("K2_tr3:")
    a(f"""
    K2_back2:
    s_cmp_lg_u32 s{sAdone}, 0
    s_cbranch_scc1 K2_adone
    """)
    w1load(4, guard=False)
    stamp(a, cfg, "k2", 5)
    if not EARLY_A:
        a_prime()
    a(f"""
    K2_adone:
    s_cmp_lg_u32 s{sOver}, 0
    s_cbranch_scc1 K2_slowstart
    """)
    for k in range(4):
        a(f"v_mov_b64 {v(M+2*k,2)}, 0")
    for k in range(8):
        a(f"v_mov_b64 {v(ACC+2*k,2)}, 0")
    a(f"""
    s_xor_b32 s{sG}, s{sLast}, 1
    s_or_b32 s{sG}, s{sG}, s{sJ0}
    s_min_u32 s{sG}, s{sG}, 1
    s_lshl_b32 s{sG}, s{sG}, 3
    v_mov_b32 v{x0}, 0x3e803e80
    v_mov_b32 v{x1}, 0x3e803e80
    v_mov_b32 v{x2}, 0x3e803e80
    v_mov_b32 v{x3}, 0x3e803e80
    s_mov_b32 s{sP}, 0
    s_cmp_ge_u32 s{sW}, 4
    s_cselect_b32 s{sFlip}, {cfg.get("flipg", 2)}, 99
    s_mov_b32 s{sCO}, 0
    s_lshl_b32 s{sWC+2}, s{sLast}, 14
    v_mov_b32 v{vCB}, v{vHB}
    v_mov_b32 v{vCS}, v{vHS}
    s_cmp_lg_u32 s{sJ0}, 0
    s_cbranch_scc1 K2_reload0
    K2_back3:
    """)
    stamp(a, cfg, "k2", 6)

    def frag_reads(slot):
        return [f"ds_read_b128 {v(BF,4)}, v{vR0} offset:{2048*slot}",
                f"ds_read_b128 {v(BF+4,4)}, v{vR1} offset:{2048*slot}"]

    def pre_mfma(q):
        Q = v(P[q], 16)
        return [f"v_mfma_f32_32x32x16_bf16 {Q}, {v(FA,4)}, {v(FB,4)}, 0",
                f"v_mfma_f32_32x32x16_bf16 {Q}, {v(BF,4)}, {v(ILO,4)}, {Q}",
                f"v_mfma_f32_32x32x16_bf16 {Q}, {v(BF+4,4)}, {v(IHI,4)}, {Q}"]

    agg = [f"v_mfma_f32_32x32x16_bf16 {v(ACC,16)}, {v(M,4)}, {v(S,4)}, {v(ACC,16)}",
           f"v_mfma_f32_32x32x16_bf16 {v(ACC,16)}, {v(M+4,4)}, {v(S+4,4)}, {v(ACC,16)}"]
    cm = [f"v_mfma_f32_32x32x16_bf16 {v(CB,16)}, {v(WC,4)}, {v(HCB,4)}, {v(CB,16)}",
          f"v_mfma_f32_16x16x32_bf16 {v(CS,4)}, {v(WC,4)}, {v(HCS,4)}, {v(CS,4)}"]

    def c_load(k):
        if cfg.get("x_nocl"):
            return []
        return [f"buffer_load_dwordx4 {v(WC,4)}, v{vW16}, s[{sWC}:{sWC+3}], s{sCO} offen offset:{1024*k}"]

    if cfg.get("x_noc"):
        cm = ["s_nop 0", "s_nop 0"]

    def c_read(k):
        if cfg.get("x_noc"):
            return []
        return [f"ds_read_b128 {v(HCB,4)}, v{vCB} offset:{32*k}", f"ds_read_b128 {v(HCS,4)}, v{vCS} offset:{32*k}"]

    if cfg.get("x_trace"):
        a(f"s_mov_b32 s98, 0\nv_mov_b32 v{vLst}, 0")
    if STR == 2:
        a("s_waitcnt lgkmcnt(0)\ns_barrier")
    a("s_waitcnt vmcnt(2)")
    a("\n".join(frag_reads(0) + src_read(0, 2) + [f"ds_read_b128 {v(FA,4)}, v{vA}"] + c_read(0) + c_load(0)
                + ["s_waitcnt lgkmcnt(0)"] + dma(0) + pre_mfma(0)))
    a(f"s_cmp_eq_u32 s{sLast}, 0\ns_cbranch_scc1 K2_nextw")
    wload(2, 0, w2c[1])
    npw = 0
    if cfg.get("prewrite_out", 0):
        npw = 2
        a(f"""
        s_mul_i32 s{sT1}, s{sB}, 20480
        v_lshl_add_u32 v{x0}, v0, 4, s{sT1}
        v_add_u32 v{x1}, 8192, v{x0}
        v_add_u32 v{x2}, 16384, v{x0}
        global_store_dwordx4 v{x0}, {v(M,4)}, s[20:21] {cfg.get('prewrite_out')}
        global_store_dwordx4 v{x1}, {v(M,4)}, s[20:21] {cfg.get('prewrite_out')}
        s_cmp_ge_u32 s{sW}, 4
        s_cbranch_scc1 K2_nopw
        global_store_dwordx4 v{x2}, {v(M,4)}, s[20:21] {cfg.get('prewrite_out')}
        K2_nopw:
        """)
    if prio:
        a(f"s_setprio 1")
    a(f"s_waitcnt vmcnt({2 + w2s[0] + npw})")
    stamp(a, cfg, "k2", 7)
    a("s_branch K2_next")

    ADDM = cfg.get("addm", 1)
    ONE = X

    def body(p, nq, last, withc=True):
        n = 4 * nq
        Pp = P[p]
        E = [f"v_exp_f32 v{T+i}, v{Pp+i}" for i in range(n)]
        A = [f"v_pk_add_f32 {v(T+i,2)}, {v(T+i,2)}, 1.0 op_sel_hi:[1,0]" for i in range(0, n, 2)]
        Rr = [f"v_rcp_f32 v{T+i}, v{T+i}" for i in range(n)]
        U = [f"v_pk_mul_f32 {v(T+i,2)}, {v(T+i,2)}, {v(Pp+i,2)}" for i in range(0, n, 2)]
        C = [f"v_cvt_pk_bf16_f32 v{M+i//2}, v{T+i}, v{T+i+1}" for i in range(0, n, 2)]
        fa = [f"ds_read_b128 {v(FA,4)}, v{vA} offset:{3072*(p+1)}"]
        sread = [f"ds_read_b64_tr_b16 {v(S+2*k,2)}, v{vST} offset:{3072*p+512*k}" for k in range(4)]
        if nq <= 2:
            sread = sread[:2]
        head = frag_reads(1 - p) + src_read(1 - p, p + 3)
        c0, c1 = ([cm[0]], [cm[1]]) if withc else ([], [])
        cl = c_load(p + 1) if withc else []
        cr = c_read(p + 1) if withc else []
        d = dma(1 - p)
        pm = pre_mfma(1 - p)
        rot = []
        if last:
            rot = [f"v_mov_b64 {v(M,2)}, {v(FB,2)}", f"v_mov_b64 {v(FB,2)}, {v(AP,2)}"]
            rot += [f"v_mov_b64 {v(AP+2*k,2)}, {v(AP+2*k+2,2)}" for k in range(3)]
            rot += [f"v_mov_b64 {v(AP+6,2)}, {v(M,2)}"]
        trace = []
        if cfg.get("x_trace"):
            trace = ["s_memtime s[68:69]", "s_waitcnt lgkmcnt(0)", "s_lshl_b64 exec, 1, s98", f"v_mov_b32 v{vLst}, s68", "s_mov_b64 exec, -1", "s_add_u32 s98, s98, 1"]
        if ADDM and nq >= 3:
            am = [f"v_mfma_f32_32x32x16_bf16 {v(T,16)}, {v(ONE,4)}, {v(ONE,4)}, {v(T,16)}"]
            k = n - 10
            seq = head + fa + rot
            if withc:
                seq += E[:1] + c0 + E[1:k-1] + c1 + E[k-1:k]
            else:
                seq += E[:k]
            seq += trace + ["s_waitcnt lgkmcnt(0)", pm[0]] + E[k:k+3] + [pm[1]] + E[k+3:k+6] + [pm[2]] + E[k+6:]
            mem = cl + d + sread + cr
            seq += mem[:2] + am + mem[2:] + [f"s_nop {11 - len(mem[2:])}"]
            seq += Rr + ["s_waitcnt lgkmcnt(0)"]
        else:
            dm = cl + [f"s_waitcnt lgkmcnt({1+len(sread)})"] + d + cr
            k0, k1, k2 = (3, 6, 10) if nq >= 3 else ((2, 4, 6) if nq == 2 else (1, 2, 4))
            seq = head + E[:k0] + c0 + fa + sread + E[k0:k1] + c1 + E[k1:k2] + dm + E[k2:] + A + rot + trace
            seq += ["s_waitcnt lgkmcnt(0)"]
            if nq == 1:
                seq += [pm[0]] + Rr[:2] + [pm[1]] + Rr[2:4] + [pm[2]]
            else:
                seq += [pm[0]] + Rr[:3] + [pm[1]] + Rr[3:6] + [pm[2]] + Rr[6:]
        adv = []
        if p == 1:
            adv = [f"v_add_u32 v{vA}, 6144, v{vA}", f"v_add_u32 v{vSr}, 6144, v{vSr}"]
            seq += [f"v_add_u32 v{vST}, 6144, v{vST}"]
            if withc:
                seq += [f"v_add_u32 v{vCB}, 64, v{vCB}", f"v_add_u32 v{vCS}, 64, v{vCS}", f"s_add_u32 s{sCO}, s{sCO}, 2048"]
        if nq == 4:
            seq += U[:4] + C[:4] + U[4:] + [agg[0]] + C[4:]
            seq += (adv or ["s_nop 0"])
            if not last:
                seq += [f"s_add_u32 s{sM}, s{sM}, s{sM}"]
            elif p == 0:
                seq += ["s_nop 0"]
            seq += [agg[1]]
        elif nq == 3:
            seq += U + C + [agg[0]] + (adv or ["s_nop 1"]) + [agg[1]]
        else:
            seq += U + C + (adv or ["s_nop 1"]) + [agg[0]]
        a("\n".join(seq))

    NOC = cfg.get("noc", 0)
    if NOC:
        a(".p2align 3")
        a("K2_n0w:\ns_waitcnt vmcnt(2)\nK2_n0:")
        body(0, 4, False, False)
        a("s_cbranch_scc1 K2_l1w\nK2_n1w:\ns_waitcnt vmcnt(2)\nK2_n1:")
        body(1, 4, False, False)
        a("s_cbranch_scc0 K2_n0w\ns_branch K2_l0w")
    a(".p2align 3")
    a("K2_g0w:\ns_waitcnt vmcnt(2)\nK2_g0:")
    body(0, 4, False)
    a("s_cbranch_scc1 K2_l1w\nK2_g1w:\ns_waitcnt vmcnt(2)\nK2_g1:")
    body(1, 4, False)
    a("s_cbranch_scc0 K2_g0w")
    for p in (0, 1):
        a(f"K2_l{p}w:\ns_waitcnt vmcnt(2)\nK2_l{p}:")
        if prio == 1:
            setprio(0, None)
        elif prio == 2:
            a("s_setprio 0")
        a(f"""
        s_mov_b32 s{sP}, {1-p}
        s_bitcmp0_b32 s{sQ}, 1
        s_cbranch_scc1 K2_l{p}_lo
        s_bitcmp0_b32 s{sQ}, 0
        s_cbranch_scc1 K2_l{p}_3
        """)
        body(p, 4, True)
        a(f"s_branch K2_flush\nK2_l{p}_3:")
        body(p, 3, True)
        a(f"s_branch K2_flush\nK2_l{p}_lo:\ns_bitcmp0_b32 s{sQ}, 0\ns_cbranch_scc1 K2_l{p}_1")
        body(p, 2, True)
        a(f"s_branch K2_flush\nK2_l{p}_1:")
        body(p, 1, True)
        if p == 0:
            a("s_branch K2_flush")
    vP4 = T + 8

    def flush_core(g):
        for k in range(8):
            a(f"v_cvt_pk_bf16_f32 v{T+k}, v{ACC+2*k}, v{ACC+2*k+1}")
        a(f"s_mov_b64 exec, s[{sC4}:{sC4+1}]")
        for q in range(4):
            a(f"ds_write_b64 v{vMW}, {v(T+2*q,2)} offset:{8*528*g+16*q}")
        a("s_mov_b64 exec, -1")
        dst = PP[g] if g < 4 else vP4
        for k in range(8):
            a(f"v_dot2_f32_bf16 v{dst}, v{T+k}, v{WX+k}, {'0' if k == 0 else v(dst)}")
        if g < 4:
            for k in range(8):
                a(f"v_mov_b64 {v(ACC+2*k,2)}, 0")
    a("K2_flush:")
    if cfg.get("stamps"):
        a(f"s_cmp_lg_u32 s{sG}, {cfg.get('stamp_g', 0)}\ns_cbranch_scc1 K2_nost")
        stamp(a, cfg, "k2", 13)
        a("K2_nost:")
    a(f"s_lshr_b32 s{sQ}, s{sQ}, 2\ns_add_u32 s{sG}, s{sG}, 1\nK2_flush2:")
    for g in range(4):
        a(f"s_cmp_eq_u32 s{sG}, {g+1}\ns_cbranch_scc1 K2_x{g}")
    a(f"s_cmp_lg_u32 s{sG}, 5\ns_cbranch_scc1 K2_slowflush")
    flush_core(4)
    stamp(a, cfg, "k2", 8)
    HU = ACC
    hu = lambda i: ACC + i if i < 16 else M + i - 16
    y0, y1, y2, y3, y4, y5 = AP, AP + 1, AP + 2, AP + 3, AP + 4, AP + 5
    a(f"""
    s_lshl_b32 s{sT0}, s{sP}, 10
    s_add_u32 s{sCO}, s{sCO}, s{sT0}
    s_cmp_lt_u32 s{sCO}, 16384
    s_cbranch_scc1 K2_crest
    K2_cdone:
    """)
    for q in range(4):
        a(f"ds_read_b64 {v(HR+2*q,2)}, v{vOB} offset:{16*q}")
    a(f"""
    ds_read_b64 {v(HR+8,2)}, v{vOS}
    v_cmp_ne_u32 vcc, {ZERO}, v{vHS}
    v_add_u32 v{vHB}, {MT-HT}, v{vHB}
    v_add_u32 v{y2}, {MT-HT}, v{vHS}
    v_cndmask_b32_e64 v{vHS}, v{vHS}, v{y2}, vcc
    v_lshl_add_u32 v{y2}, v{vL}, 2, s{sRing}
    s_waitcnt vmcnt(0)
    ds_write2st64_b32 v{y2}, v{PP[0]}, v{PP[1]} offset0:0 offset1:1
    ds_write2st64_b32 v{y2}, v{PP[2]}, v{PP[3]} offset0:2 offset1:3
    ds_write_b32 v{y2}, v{vP4} offset:1024
    """)
    for k in range(10):
        a(f"v_pk_mul_f32 {v(CB+2*k,2)}, {v(CB+2*k,2)}, s[{sL}:{sL+1}] op_sel_hi:[1,0]")
    a("s_waitcnt lgkmcnt(0)\ns_barrier")
    STP = cfg.get("st_place")
    if not STP: stamp(a, cfg, "k2", 9)
    if cfg.get("fprio", 1):
        a("s_setprio 2")
    else:
        a("s_setprio 0")
    gemm40(CB, CS, True, P[0], False, ahead=cfg.get("fahead", 4))
    a("s_setprio 0")
    for i in range(10):
        a(f"v_lshlrev_b32 v{hu(2*i)}, 16, v{HR+i}\nv_and_b32 v{hu(2*i+1)}, 0xffff0000, v{HR+i}")
    a(f"s_mov_b32 s{sT2}, {fbits(LN2_NEG)}")
    if not STP: stamp(a, cfg, "k2", 10)
    E0 = P[0]
    for i in range(20):
        a(f"v_exp_f32 v{E0+i}, v{CB+i}")
    for i in range(0, 20, 2):
        a(f"v_pk_add_f32 {v(E0+i,2)}, {v(E0+i,2)}, 1.0 op_sel_hi:[1,0]")
    for i in range(20):
        a(f"v_rcp_f32 v{E0+i}, v{E0+i}")
    for i in range(0, 20, 2):
        a(f"v_pk_mul_f32 {v(E0+i,2)}, {v(E0+i,2)}, {v(CB+i,2)}")
    for i in range(0, 20, 2):
        a(f"v_pk_fma_f32 {v(E0+i,2)}, {v(E0+i,2)}, s[{sT2}:{sT2+1}], {v(hu(i),2)} op_sel_hi:[1,0,1]")
    for i in range(10):
        a(f"v_cvt_pk_bf16_f32 v{T+i}, v{E0+2*i}, v{E0+2*i+1}")
    for q in range(4):
        a(f"ds_write_b64 v{vOB}, {v(T+2*q,2)} offset:{16*q}")
    a(f"""
    ds_write_b64 v{vOS}, {v(T+8,2)}
    v_lshrrev_b32 v{y2}, 5, v0
    v_and_b32 v{y3}, 31, v0
    v_mul_u32_u24 v{y2}, 528, v{y2}
    v_lshl_add_u32 v{y2}, v{y3}, 4, v{y2}
    s_mul_i32 s{sT1}, s{sB}, 20480
    v_lshl_add_u32 v{y3}, v0, 4, s{sT1}
    v_add_u32 v{y4}, 8192, v{y3}
    v_add_u32 v{y5}, 16384, v{y3}
    s_cmp_ge_u32 s{sW}, 2
    s_cbranch_scc1 K2_nopp
    v_min_u32 v{y0}, 119, v0
    v_mul_u32_u24 v{y1}, 171, v{y0}
    v_lshrrev_b32 v{y1}, 9, v{y1}
    v_add3_u32 v{y1}, v{y0}, v{y1}, 1
    v_lshrrev_b32 v{x0}, 5, v{y1}
    v_lshlrev_b32 v{y1}, 2, v{y1}
    ds_read_b32 v{vPOS}, v{y1} offset:{PT-4}
    v_lshl_add_u32 v{y1}, v{x0}, 7, v{y1}
    v_add_u32 v{y1}, {RING}, v{y1}
    v_add_u32 v{x0}, 128, v{y1}
    """)
    for k in range(4):
        a(f"ds_read2st64_b32 {v(CB+4*k,2)}, v{y1} offset0:{32*k} offset1:{32*k+16}")
        a(f"ds_read2st64_b32 {v(CB+4*k+2,2)}, v{x0} offset0:{32*k} offset1:{32*k+16}")
    a(f"""
    s_mul_i32 s{sT0}, s{sB}, 240
    s_add_u32 s{sT0}, s{sT0}, 5120000
    v_lshl_add_u32 v{y0}, v{y0}, 1, s{sT0}
    v_cmp_gt_u32 vcc, 120, v0
    s_waitcnt lgkmcnt(0)
    """)
    for n in (8, 4, 2):
        for k in range(0, n, 2):
            a(f"v_pk_add_f32 {v(CB+k,2)}, {v(CB+k,2)}, {v(CB+n+k,2)}")
    a(f"""
    v_add_f32 v{y1}, v{CB}, v{CB+1}
    v_fma_f32 v{y1}, v{y1}, s{sT2}, v{vPOS}
    v_cvt_pk_bf16_f32 v{y1}, v{y1}, v{y1}
    s_mov_b64 exec, vcc
    global_store_short v{y0}, v{y1}, s[20:21] {ost}
    s_mov_b64 exec, -1
    K2_nopp:
    s_waitcnt lgkmcnt(0)
    s_barrier
    ds_read_b128 {v(P[0],4)}, v{y2} offset:{HT}
    ds_read_b128 {v(P[0]+4,4)}, v{y2} offset:{HT+8448}
    s_cmp_ge_u32 s{sW}, 4
    s_cbranch_scc1 K2_o2
    ds_read_b128 {v(P[0]+8,4)}, v{y2} offset:{HT+2*8448}
    s_waitcnt lgkmcnt(0)
    global_store_dwordx4 v{y5}, {v(P[0]+8,4)}, s[20:21] {ost}
    K2_o2:
    s_waitcnt lgkmcnt(0)
    global_store_dwordx4 v{y3}, {v(P[0],4)}, s[20:21] {ost}
    global_store_dwordx4 v{y4}, {v(P[0]+4,4)}, s[20:21] {ost}
    """)
    if not STP: stamp(a, cfg, "k2", 11)
    stamp(a, cfg, "k2", 12, wait=True)
    if cfg.get("x_trace"):
        a(f"s_lshl_b32 s3, s2, 11\ns_add_u32 s3, s3, {WS_STAMP + (2 << 20)}\nv_lshl_add_u32 v2, v0, 2, s3\nglobal_store_dword v2, v{vLst}, s[{sWS}:{sWS+1}]")
    stamp_flush(a, cfg, "k2", sWS)
    a("K2_exit:\ns_endpgm")

    for g in range(4):
        a(f"K2_x{g}:")
        wload(2, w2c[g + 1], w2c[g + 2])
        fill_ = 12 - (4 + 2 * g) - (w2s[g + 1] + (1 if w2s[g + 1] else 0))
        if fill_ > 0:
            a(f"s_nop {fill_-1}")
        flush_core(g)
        a(f"s_cmp_lg_u32 s{sJ0}, 0\ns_cbranch_scc1 K2_reload") if False else None
        a(f"s_waitcnt vmcnt({2+w2s[g+1]})")
        if g < 3:
            a("s_branch K2_next")
    a("K2_next:")
    if prio == 1:
        setprio(2, None)
    elif prio == 2:
        a("s_setprio 1")
        if cfg.get("flipg", 2) < 5:
            a(f"s_cmp_lt_u32 s{sG}, s{sFlip}\ns_cbranch_scc1 K2_nf\ns_setprio 2\nK2_nf:")
    a(f"""
    s_add_u32 s{sM}, s{sM}, s{sM}
    s_cbranch_scc1 K2_nextl
    """)
    if NOC:
        a(f"s_cmp_ge_u32 s{sCO}, 16384\ns_cbranch_scc1 K2_nextn")
    a(f"""
    s_cmp_eq_u32 s{sP}, 0
    s_cbranch_scc1 K2_g0
    s_branch K2_g1
    K2_nextl:
    s_cmp_eq_u32 s{sP}, 0
    s_cbranch_scc1 K2_l0
    s_branch K2_l1
    """)
    if NOC:
        a(f"K2_nextn:\ns_cmp_eq_u32 s{sP}, 0\ns_cbranch_scc1 K2_n0\ns_branch K2_n1")
    a(f"""
    K2_crest:
    s_lshr_b32 s{sT0}, s{sCO}, 5
    v_add_u32 v{vCB}, s{sT0}, v{vHB}
    v_add_u32 v{vCS}, s{sT0}, v{vHS}
    s_waitcnt vmcnt(0) lgkmcnt(0)
    """)
    a("\n".join(c_load(0) + c_read(0) + ["s_waitcnt vmcnt(0) lgkmcnt(0)"] + cm))
    a(f"""
    s_add_u32 s{sCO}, s{sCO}, 1024
    s_cmp_lt_u32 s{sCO}, 16384
    s_cbranch_scc1 K2_crest
    s_nop 7
    s_branch K2_cdone
    """)

    def spill_addr(greg):
        a(f"""
        s_lshl_b32 s{sSp}, s2, 3
        s_add_u32 s{sSp}, s{sSp}, s{sW}
        s_mul_i32 s{sSp}, s{sSp}, 5
        s_add_u32 s{sSp}, s{sSp}, s{greg}
        s_lshl_b32 s{sSp}, s{sSp}, 12
        s_add_u32 s{sSp}, s{sSp}, {WS_SPILL}
        """)

    def spill_load():
        for k in range(4):
            a(f"buffer_load_dwordx4 {v(ACC+4*k,4)}, v{vW16}, s[{sWS}:{sWS+3}], s{sSp} offen offset:{1024*k} sc1")
        a("s_waitcnt vmcnt(0)")
    a(f"""
    K2_nextw:
    s_waitcnt vmcnt(0) lgkmcnt(0)
    s_nop 7
    s_branch K2_next
    K2_again1:
    s_waitcnt vmcnt(0)
    s_branch K2_back1
    K2_over1:
    """)
    w1load(3, guard=False)
    a(f"""
    s_waitcnt vmcnt(0) lgkmcnt(0)
    s_branch K2_back2
    K2_slowstart:
    s_mov_b32 s{sR}, {SLOW_R}
    s_branch K2_setlast
    K2_nextpass:
    s_add_u32 s{sJ0}, s{sJ0}, {SLOW_R}
    K2_setlast:
    s_add_u32 s{sT0}, s{sJ0}, {SLOW_R}
    s_cmp_ge_u32 s{sT0}, s{sTmax}
    s_cselect_b32 s{sLast}, 1, 0
    s_waitcnt vmcnt(0) lgkmcnt(0)
    s_barrier
    """)
    zero_fill()
    a("s_branch K2_expand")
    a(f"K2_slowflush:\ns_sub_u32 s{sT1}, s{sG}, 9")
    spill_addr(sT1)
    for k in range(4):
        a(f"buffer_store_dwordx4 {v(ACC+4*k,4)}, v{vW16}, s[{sWS}:{sWS+3}], s{sSp} offen offset:{1024*k} sc1")
    a("s_waitcnt vmcnt(0)")
    for k in range(8):
        a(f"v_mov_b64 {v(ACC+2*k,2)}, 0")
    a(f"""
    s_cmp_ge_u32 s{sG}, 13
    s_cbranch_scc1 K2_slowend
    s_cmp_eq_u32 s{sJ0}, 0
    s_cbranch_scc1 K2_nextw
    s_sub_u32 s{sT1}, s{sG}, 8
    """)
    spill_addr(sT1)
    spill_load()
    a(f"""
    s_branch K2_nextw
    K2_slowend:
    s_cmp_eq_u32 s{sLast}, 0
    s_cbranch_scc1 K2_nextpass
    """)
    wload(2, w2c[1], 16)
    for g in range(5):
        a(f"s_mov_b32 s{sT1}, {g}")
        spill_addr(sT1)
        spill_load()
        if g < 4:
            flush_core(g)
    a(f"s_mov_b32 s{sG}, 5\ns_branch K2_flush2\nK2_reload0:\ns_mov_b32 s{sT1}, 0")
    spill_addr(sT1)
    spill_load()
    a("s_branch K2_back3")
    return dict(vgpr=((al.n + 7) // 8) * 8, sgpr=100 if cfg.get("stamps") else 72, lds=K2_LDS, threads=512, grid=256)
```

```python
import sys, json
from common import *
from asmlib import Asm
import build as B

COLD = True

def body(which, mult, nw1):
    a = Asm()
    a("s_cmp_lg_u32 s2, 0\ns_cbranch_scc1 DG_end\ns_load_dwordx2 s[4:5], s[0:1], 80\ns_waitcnt lgkmcnt(0)")
    for n, (k, idx, op) in enumerate((which[:3], which[3:])):
        off = WS_STAMP + (0 if k == 1 else 1 << 20) + 4 * idx
        acc = 4 + n
        first = True
        nw = nw1 if k == 1 else 8
        for blk in range(4):
            a(f"v_lshlrev_b32 v1, 10, v0\nv_add_u32 v1, {off + blk*65536}, v1")
            if k == 2:
                a(f"v_add_u32 v2, {64*blk}, v0\nv_and_b32 v3, 7, v2\nv_lshlrev_b32 v3, 5, v3\nv_lshrrev_b32 v2, 3, v2\nv_add_u32 v2, v2, v3\nv_cmp_gt_u32 vcc, 250, v2\nv_mov_b32 v2, {off}\ns_nop 1\nv_cndmask_b32_e64 v1, v2, v1, vcc")
            for w in range(nw):
                a(f"global_load_dword v2, v1, s[4:5] offset:{64*w}\ns_waitcnt vmcnt(0)")
                if first:
                    a(f"v_mov_b32 v{acc}, v2"); first = False
                else:
                    a(f"v_{op}_u32 v{acc}, v{acc}, v2")
        if op == "min":
            a(f"v_not_b32 v{acc}, v{acc}")
        scan(a, acc, "v_max_u32", 64)
        a(f"s_nop 1\nv_readlane_b32 s{6+n}, v{acc}, 63")
        if op == "min":
            a(f"s_nop 3\ns_not_b32 s{6+n}, s{6+n}")
    a(f"""s_nop 3
    s_sub_u32 s8, s7, s6
    s_min_u32 s8, s8, 10000
    v_mov_b32 v1, {60 << 20}
    v_mov_b32 v3, 0x13572468
    global_load_dword v2, v1, s[4:5] sc1
    s_waitcnt vmcnt(0)
    global_store_dword v1, v3, s[4:5] sc1
    v_readfirstlane_b32 s9, v2
    s_nop 3
    s_cmp_eq_u32 s9, 0x13572468
    s_cselect_b32 s8, {'0, s8' if COLD else 's8, 0'}
    s_mul_i32 s8, s8, {mult}
    s_memrealtime s[10:11]
    s_waitcnt lgkmcnt(0)
    s_add_u32 s8, s8, s10
    DG_wait:
    s_memrealtime s[10:11]
    s_waitcnt lgkmcnt(0)
    s_sub_u32 s9, s8, s10
    s_cmp_gt_i32 s9, 0
    s_cbranch_scc1 DG_wait
    DG_end:""")
    return a.text()

def make(out, cfg, sp, mult=40):
    cfg = dict(cfg)
    x, y = sp.split("-")
    ka, ia = map(int, x.split(".")); kb, ib = map(int, y.split("."))
    cfg.update(stamps="rt", extra_empty=1, stamp_only=[[f"k{ka}", ia], [f"k{kb}", ib]])
    cfg["extra_body"] = body((ka, ia, "min", kb, ib, "min" if (kb, ib) == (2, 0) else "max"), mult, 14)
    open(out, "w").write(B.build(cfg))

if __name__ == "__main__":
    make(sys.argv[1], json.loads(sys.argv[2]), sys.argv[3])
```

```python
from asmlib import Asm, Lgkm, v, s
from common import *

HIST, STARTS, REC = 0, 1024, 2048
STG = REC + REC_STRIDE + 256
HT = STG + 80 * 272 + 256
WT = HT + 80 * 512
K1_LDS = WT + 65536
K1_THREADS = 896
assert HT % 512 == 0 and WT % 256 == 0 and K1_LDS <= 163840


def gen_k1(a: Asm, cfg):
    st = cfg.get("k1_store", "sc1")
    PRE = cfg.get("k1_pre", 6)
    RECB = cfg.get("k1_recb", 3)
    HB1 = cfg.get("k1_hb1", 10)
    GPOS = cfg.get("k1_gpos", 0)
    EAP = cfg.get("k1_eap", 1)
    FE = cfg.get("k1_fe", "")
    FH = cfg.get("k1_fh", "")
    FF = cfg.get("k1_ff", "")
    sWAVE, sRT, sHALF, sT0, sT1, sT2 = 36, 37, 38, 39, 42, 43
    sEDGE = 40
    sPOS = 24
    sTASK = 45
    vL = 1
    vX0, vX1, vX2, vX3 = 6, 7, 8, 9
    a.label(K1_NAME)
    a(f"""
    s_cmp_ge_u32 s2, 256
    s_cbranch_scc1 K1_exit
    s_load_dwordx16 s[4:19], s[0:1], 0
    s_load_dwordx2 s[20:21], s[0:1], 80
    """)
    stamp(a, cfg, "k1", 0)
    a(f"""
    v_lshrrev_b32 v{vX0}, 6, v0
    v_and_b32 v{vL}, 63, v0
    v_readfirstlane_b32 s{sWAVE}, v{vX0}
    s_and_b32 s{sT0}, s2, 7
    s_lshr_b32 s{sT1}, s2, 3
    s_and_b32 s{sHALF}, s{sT1}, 1
    s_lshr_b32 s{sT1}, s{sT1}, 1
    {f"s_lshl_b32 s{sT0}, s{sT0}, 4" if cfg.get("k1_map", 1) else f"s_lshl_b32 s{sT1}, s{sT1}, 3"}
    s_add_u32 s{sRT}, s{sT1}, s{sT0}
    s_cmp_ge_u32 s{sWAVE}, 4
    s_cbranch_scc1 K1_sort
    """)
    vWA, vHA, vSB = 2, 10, 3
    vGH, vGW = 4, 5
    a(f"""
    v_lshlrev_b32 v{vX1}, 2, v0
    v_mov_b32 v{vX2}, 0
    ds_write_b32 v{vX1}, v{vX2}
    s_cmp_ge_u32 s{sRT}, 125
    s_cbranch_scc1 K1_idle
    v_lshrrev_b32 v{vX0}, 4, v{vL}
    v_and_b32 v{vX1}, 15, v{vL}
    v_lshlrev_b32 v{vGW}, 2, v{vX0}
    v_xor_b32 v{vX1}, v{vX1}, v{vGW}
    v_lshlrev_b32 v{vX1}, 4, v{vX1}
    v_lshl_add_u32 v{vX1}, v{vX0}, 9, v{vX1}
    s_lshl_b32 s{sT0}, s{sWAVE}, 15
    s_lshl_b32 s{sT1}, s{sHALF}, 8
    s_add_u32 s{sT0}, s{sT0}, s{sT1}
    s_add_u32 s{sT0}, s{sT0}, {256*512}
    v_add_u32 v{vGW}, s{sT0}, v{vX1}
    v_lshrrev_b32 v{vX0}, 5, v{vL}
    v_and_b32 v{vX1}, 31, v{vL}
    s_lshl_b32 s{sT0}, s{sWAVE}, 1
    v_add_u32 v{vX2}, s{sT0}, v{vX0}
    v_xor_b32 v{vX3}, v{vX2}, v{vX1}
    s_mul_i32 s{sT1}, s{sRT}, 80
    v_add_u32 v{vX2}, s{sT1}, v{vX2}
    v_lshlrev_b32 v{vX2}, 9, v{vX2}
    v_lshl_add_u32 v{vGH}, v{vX3}, 4, v{vX2}
    v_xor_b32 v18, 128, v{vGH}
    v_add_u32 v18, 4096, v18
    s_lshl_b32 s{sT0}, s{sWAVE}, 10
    s_add_u32 s{sT0}, s{sT0}, {HT}
    s_lshl_b32 s{sT1}, s{sWAVE}, 14
    s_add_u32 s{sT1}, s{sT1}, {WT}
    s_waitcnt lgkmcnt(0)
    """)
    stamp(a, cfg, "k1", 7)
    loads, hl = [], []
    for i in range(10):
        r = vGH if i % 2 == 0 else 18
        hl.append([f"s_add_u32 m0, s{sT0}, {4096*i}", f"v_add_u32 v{r}, 8192, v{r}" if i >= 2 else "s_nop 0",
                      f"global_load_lds_dwordx4 v{r}, s[4:5] {FH}"])
    for i in range(16):
        loads.append([f"s_add_u32 m0, s{sT1}, {1024*i}", f"v_add_u32 v{vGW}, 2048, v{vGW}" if i else "s_nop 0",
                      f"global_load_lds_dwordx4 v{vGW}, s[14:15]"])
    loads = loads + hl[:HB1]
    if cfg.get("l2pf", 0):
        a(f"""
        s_lshr_b32 s{sT2}, s2, 3
        s_lshl_b32 s{sT2}, s{sT2}, 12
        s_add_u32 s{sT2}, s{sT2}, {256*512}
        v_lshl_add_u32 v93, v0, 4, s{sT2}
        global_load_dword v93, v93, s[14:15]
        """)
    for t in loads[:PRE]:
        a("\n".join(t))
    a("s_branch K1_gemm2")
    vDST, vSRC, vEA = 2, 3, 4
    vPS = 12
    vBK, vDL, vRK = 14, 15, 16
    vF = 36
    vC = 44
    a(f"""
    K1_sort:
    v_subrev_u32 v{vX0}, 256, v0
    v_cmp_gt_u32 vcc, 625, v{vX0}
    s_mul_i32 s{sT0}, s2, 625
    v_min_u32 v{vX0}, 624, v{vX0}
    v_add_u32 v{vX0}, s{sT0}, v{vX0}
    s_mov_b64 s[{sEDGE}:{sEDGE+1}], vcc
    v_lshlrev_b32 v{vX1}, 2, v{vX0}
    v_lshlrev_b32 v18, 3, v{vX0}
    s_mov_b32 s{sPOS+2}, 60000
    s_mov_b32 s{sPOS+3}, 0x20000
    s_lshl_b32 s{sTASK}, s2, 1
    s_add_u32 s{sTASK}, s{sTASK}, s{sWAVE}
    s_sub_u32 s{sTASK}, s{sTASK}, 4
    s_cmp_ge_u32 s{sWAVE}, 6
    s_cselect_b32 s{sTASK}, 1000, s{sTASK}
    v_mov_b32 v{vX3}, 1
    s_waitcnt lgkmcnt(0)
    global_load_dword v{vDST}, v{vX1}, s[12:13] {FE}
    global_load_dword v{vSRC}, v{vX1}, s[10:11] {FE}
    """)
    ea = f"global_load_dwordx2 v[{vEA}:{vEA+1}], v18, s[8:9] {FE}"
    gather = f"buffer_load_dwordx2 v[{vPS}:{vPS+1}], v{vX1}, s[{sPOS}:{sPOS+3}], 0 offen"
    if EAP == 0:
        a(ea)
    stamp(a, cfg, "k1", 7)
    a(f"""
    s_barrier
    s_mov_b32 s{sPOS}, s6
    s_mov_b32 s{sPOS+1}, s7
    v_lshlrev_b32 v{vX2}, 4, v{vL}
    s_waitcnt vmcnt({1 if EAP == 0 else 0})
    """)
    stamp(a, cfg, "k1", 8)
    a(f"""
    v_mul_u32_u24 v{vBK}, {52429}, v{vDST}
    v_mul_u32_u24 v{vX1}, 6, v{vSRC}
    v_lshrrev_b32 v{vBK}, 21, v{vBK}
    v_mul_u32_u24 v{vDL}, 40, v{vBK}
    v_lshlrev_b32 v{vBK}, 2, v{vBK}
    s_mov_b64 exec, s[{sEDGE}:{sEDGE+1}]
    ds_add_rtn_u32 v{vRK}, v{vBK}, v{vX3}
    s_mov_b64 exec, -1
    v_and_b32 v{vX1}, -4, v{vX1}
    v_sub_u32 v{vDL}, v{vDST}, v{vDL}
    v_lshl_or_b32 v{vDL}, v{vSRC}, 16, v{vDL}
    {gather if GPOS == 0 else ""}
    s_waitcnt lgkmcnt(0)
    """)
    stamp(a, cfg, "k1", 1)
    a(f"""
    s_barrier
    {gather if GPOS == 1 else ""}
    {ea if EAP == 1 else ""}
    """)
    stamp(a, cfg, "k1", 2)
    c0, sm, inc, o0 = vC, vC + 4, vC + 5, vC + 8
    a(f"""
    ds_read_b128 {v(c0,4)}, v{vX2} offset:{HIST}
    s_cmp_ge_u32 s{sTASK}, 392
    s_cbranch_scc1 K1_notask
    """)
    a(f"""
    s_cmp_lt_u32 s{sTASK}, 128
    s_cselect_b32 s46, s14, s18
    s_cselect_b32 s47, s15, s19
    s_cmp_ge_u32 s{sTASK}, 256
    s_cselect_b32 s{sT0}, {256*512}, 0
    s_and_b32 s{sT1}, s{sTASK}, 15
    s_lshl_b32 s{sT1}, s{sT1}, 13
    s_add_u32 s{sT0}, s{sT0}, s{sT1}
    s_bfe_u32 s{sT1}, s{sTASK}, 0x30004
    s_lshl_b32 s{sT1}, s{sT1}, 6
    s_add_u32 s{sT0}, s{sT0}, s{sT1}
    v_lshrrev_b32 v{vX0}, 5, v{vL}
    v_and_b32 v{vX1}, 31, v{vL}
    v_lshlrev_b32 v{vX3}, 12, v{vX0}
    s_cmp_lt_u32 s{sTASK}, 384
    s_cbranch_scc1 K1_nokc
    v_lshlrev_b32 v{vX3}, 9, v{vX0}
    v_sub_u32 v{vX3}, 0, v{vX3}
    s_sub_u32 s{sT0}, s{sTASK}, 384
    s_lshl_b32 s{sT0}, s{sT0}, 6
    s_add_u32 s{sT0}, s{sT0}, {509*512}
    s_mov_b32 s46, s14
    s_mov_b32 s47, s15
    K1_nokc:
    v_lshl_add_u32 v{vX1}, v{vX1}, 1, v{vX3}
    v_add_u32 v{vX1}, s{sT0}, v{vX1}
    """)
    for j in range(8):
        a(f"global_load_ushort v{vF+j}, v{vX1}, s[46:47] offset:{512*j} {FF}")
    a(f"""
    K1_notask:
    s_waitcnt lgkmcnt(0)
    v_add3_u32 v{sm}, v{c0}, v{c0+1}, v{c0+2}
    v_add_u32 v{sm}, v{sm}, v{c0+3}
    v_mov_b32 v{inc}, v{sm}
    """)
    scan(a, inc, "v_add_u32", 64)
    vRL, vRG0, vRG1, vBL, vBG = 20, 21, 22, 23, 24
    a(f"""
    v_sub_u32 v{o0}, v{inc}, v{sm}
    v_add_u32 v{o0+1}, v{o0}, v{c0}
    v_add_u32 v{o0+2}, v{o0+1}, v{c0+1}
    v_add_u32 v{o0+3}, v{o0+2}, v{c0+2}
    ds_write_b128 v{vX2}, {v(o0,4)} offset:{STARTS}
    ds_read_b32 v{vBK}, v{vBK} offset:{STARTS}
    v_subrev_u32 v{vX0}, 256, v0
    v_lshlrev_b32 v{vRL}, 4, v{vX0}
    s_mul_i32 s{sT0}, s2, {REC_STRIDE}
    s_add_u32 s{sT0}, s{sT0}, {WS_REC}
    v_add_u32 v{vRG0}, s{sT0}, v{vRL}
    v_add_u32 v{vRG1}, 10240, v{vRG0}
    v_cmp_gt_u32 vcc, 144, v{vX0}
    v_subrev_u32 v{vX0}, 384, v0
    v_lshrrev_b32 v{vX1}, 4, v{vX0}
    v_and_b32 v{vX0}, 15, v{vX0}
    v_mul_u32_u24 v{vBL}, 272, v{vX1}
    v_lshl_add_u32 v{vBL}, v{vX0}, 4, v{vBL}
    v_lshlrev_b32 v{vX1}, 9, v{vX1}
    v_lshl_add_u32 v{vBG}, v{vX0}, 4, v{vX1}
    s_mul_i32 s{sT0}, s{sRT}, {80*512}
    s_lshl_b32 s{sT1}, s{sHALF}, 8
    s_add_u32 s{sT0}, s{sT0}, s{sT1}
    s_add_u32 s{sT0}, s{sT0}, {WS_B}
    v_add_u32 v{vBG}, s{sT0}, v{vBG}
    s_cmp_ge_u32 s{sRT}, 125
    s_cselect_b32 s{sT2}, 99, 6
    s_mov_b64 s[48:49], vcc
    v_and_b32 v{vX1}, 1, v{vSRC}
    v_lshlrev_b32 v{vX1}, 4, v{vX1}
    s_waitcnt lgkmcnt(0)
    v_add_u32 v{vBK}, v{vBK}, v{vRK}
    v_mul_u32_u24 v{vBK}, 20, v{vBK}
    v_add_u32 v{vBK}, {REC}, v{vBK}
    """)

    def stage_records():
        if RECB == 2:
            a("s_waitcnt vmcnt(0)")
        a(f"""
        v_alignbit_b32 v{vPS}, v{vPS+1}, v{vPS}, v{vX1}
        v_lshrrev_b32 v{vPS+1}, v{vX1}, v{vPS+1}
        s_mov_b64 exec, s[{sEDGE}:{sEDGE+1}]
        ds_write2_b32 v{vBK}, v{vEA}, v{vEA+1} offset0:0 offset1:1
        ds_write2_b32 v{vBK}, v{vPS}, v{vDL} offset0:2 offset1:3
        ds_write_b32 v{vBK}, v{vPS+1} offset:16
        s_mov_b64 exec, -1
        s_cmp_lg_u32 s{sWAVE}, 6
        s_cbranch_scc1 K1_nooff
        v_lshl_or_b32 v{o0}, v{c0}, 16, v{o0}
        v_lshl_or_b32 v{o0+1}, v{c0+1}, 16, v{o0+1}
        v_lshl_or_b32 v{o0+2}, v{c0+2}, 16, v{o0+2}
        v_lshl_or_b32 v{o0+3}, v{c0+3}, 16, v{o0+3}
        s_lshl_b32 s{sT0}, s2, 10
        s_add_u32 s{sT0}, s{sT0}, {WS_OFF}
        v_add_u32 v{vX1}, s{sT0}, v{vX2}
        global_store_dwordx4 v{vX1}, {v(o0,4)}, s[20:21] {st}
        K1_nooff:
        s_cmp_ge_u32 s{sTASK}, 392
        s_cbranch_scc1 K1_staged
        s_cmp_ge_u32 s{sTASK}, 384
        s_cbranch_scc1 K1_kc
        v_lshl_or_b32 v{vF}, v{vF+1}, 16, v{vF}
        v_lshl_or_b32 v{vF+1}, v{vF+3}, 16, v{vF+2}
        v_lshl_or_b32 v{vF+2}, v{vF+5}, 16, v{vF+4}
        v_lshl_or_b32 v{vF+3}, v{vF+7}, 16, v{vF+6}
        s_lshl_b32 s{sT0}, s{sTASK}, 10
        s_add_u32 s{sT0}, s{sT0}, {WS_WF}
        v_add_u32 v{vX0}, s{sT0}, v{vX2}
        global_store_dwordx4 v{vX0}, {v(vF,4)}, s[20:21] {st}
        K1_staged:
        s_waitcnt lgkmcnt(0)
        """)

    def copy_records():
        a(f"""
        ds_read_b128 v[28:31], v{vRL} offset:{REC}
        s_cmp_ge_u32 s{sWAVE}, 7
        s_cbranch_scc1 K1_r1
        ds_read_b128 v[32:35], v{vRL} offset:{REC+10240}
        s_mov_b64 exec, s[48:49]
        s_waitcnt lgkmcnt(0)
        global_store_dwordx4 v{vRG1}, v[32:35], s[20:21] {st}
        s_mov_b64 exec, -1
        K1_r1:
        s_waitcnt lgkmcnt(0)
        global_store_dwordx4 v{vRG0}, v[28:31], s[20:21] {st}
        """)

    a("s_barrier")
    for r in range(3):
        if RECB == r + 2:
            stage_records()
        stamp(a, cfg, "k1", 3 + r)
        a("s_barrier")
        if r == 0 and RECB > 2:
            a("s_waitcnt vmcnt(0)")
        a(f"""
        s_cmp_lt_u32 s{sWAVE}, s{sT2}
        s_cbranch_scc1 K1_b{r}
        """)
        if r == 2:
            a(f"s_cmp_ge_u32 s{sWAVE}, 10\ns_cbranch_scc1 K1_b{r}")
        a(f"""
        ds_read_b128 {v(56+4*r,4)}, v{vBL} offset:{STG+32*272*r}
        s_waitcnt lgkmcnt(0)
        global_store_dwordx4 v{vBG}, {v(56+4*r,4)}, s[20:21] {st}
        v_add_u32 v{vBG}, 16384, v{vBG}
        K1_b{r}:
        """)
        if RECB == r + 2:
            copy_records()
    a("K1_done:")
    stamp(a, cfg, "k1", 6, wait=True)
    stamp_flush(a, cfg, "k1", 20)
    a(f"""
    K1_exit:
    s_endpgm
    K1_kc:
    v_cmp_gt_u32 vcc, 32, v{vL}
    v_mov_b32 v{vX1}, {fbits(LOG2E_NEG)}
    v_lshlrev_b32 v{vF+4}, 16, v{vF+4}
    v_lshlrev_b32 v{vF+5}, 16, v{vF+5}
    v_cndmask_b32_e64 v{vX0}, 0, v{vX1}, vcc
    v_lshlrev_b32 v{vF+6}, 16, v{vF+6}
    v_lshlrev_b32 v{vF+7}, 16, v{vF+7}
    v_mul_f32 v{vF+4}, v{vX1}, v{vF+4}
    v_mul_f32 v{vF+5}, v{vX0}, v{vF+5}
    v_mul_f32 v{vF+6}, v{vX0}, v{vF+6}
    v_mul_f32 v{vF+7}, v{vX0}, v{vF+7}
    v_cvt_pk_bf16_f32 v{vF}, v{vF+4}, v{vF+5}
    v_cvt_pk_bf16_f32 v{vF+1}, v{vF+6}, v{vF+7}
    s_sub_u32 s{sT0}, s{sTASK}, 384
    s_lshl_b32 s{sT0}, s{sT0}, 9
    s_add_u32 s{sT0}, s{sT0}, {WS_KC}
    v_lshl_add_u32 v{vX0}, v{vL}, 3, s{sT0}
    global_store_dwordx2 v{vX0}, {v(vF,2)}, s[20:21] {st}
    s_branch K1_staged
    """)

    a("K1_gemm2:")
    if cfg.get("cpf", 1):
        a(f"""
        s_getpc_b64 s[48:49]
        K1_pc:
        s_sub_u32 s48, s48, K1_pc-{K1_NAME}
        s_subb_u32 s49, s49, 0
        v_lshlrev_b32 v91, 7, v0
        v_cmp_gt_u32 vcc, (K2_crest-{K1_NAME})/128, v0
        s_and_saveexec_b64 s[50:51], vcc
        s_cbranch_execz K1_nopf
        global_load_dword v92, v91, s[48:49]
        K1_nopf:
        s_mov_b64 exec, s[50:51]
        """)
    a("s_barrier")
    for t in loads[PRE:]:
        a("\n".join(t))
    stamp(a, cfg, "k1", 9)
    a(f"""
    v_bfe_u32 v{vX0}, v{vL}, 2, 2
    v_lshrrev_b32 v{vX1}, 5, v{vL}
    v_lshl_add_u32 v{vX2}, v{vX1}, 3, v{vX0}
    v_lshlrev_b32 v{vWA}, 8, v{vX2}
    v_bfe_u32 v{vX2}, v{vL}, 4, 1
    v_bfe_u32 v{vX3}, v{vL}, 1, 1
    v_lshl_add_u32 v{vX2}, v{vX2}, 1, v{vX3}
    s_lshl_b32 s{sT2}, s{sWAVE}, 2
    v_add_u32 v{vX2}, s{sT2}, v{vX2}
    v_lshlrev_b32 v{vX0}, 2, v{vX0}
    v_xor_b32 v{vX2}, v{vX2}, v{vX0}
    v_lshl_add_u32 v{vWA}, v{vX2}, 4, v{vWA}
    v_and_b32 v{vX2}, 1, v{vL}
    v_lshl_add_u32 v{vWA}, v{vX2}, 3, v{vWA}
    v_add_u32 v{vWA}, {WT}, v{vWA}
    v_and_b32 v{vX0}, 31, v{vL}
    v_and_b32 v{vX2}, 15, v{vL}
    v_xor_b32 v{vX2}, v{vX2}, v{vX1}
    v_lshlrev_b32 v{vX2}, 4, v{vX2}
    v_lshl_add_u32 v{vX2}, v{vX0}, 9, v{vX2}
    v_add_u32 v{vHA}, {HT}, v{vX2}
    """)
    for k in range(1, 8):
        a(f"v_xor_b32 v{vHA+k}, {32*k}, v{vHA}")
    a(f"""
    v_mul_u32_u24 v{vX0}, 272, v{vX0}
    s_lshl_b32 s{sT2}, s{sWAVE}, 6
    s_add_u32 s{sT2}, s{sT2}, {STG}
    v_lshl_add_u32 v{vX1}, v{vX1}, 3, s{sT2}
    v_add_u32 v{vSB}, v{vX0}, v{vX1}
    s_mov_b32 s46, {fbits(LOG2E_NEG)}
    s_waitcnt vmcnt({HB1-4})
    """)
    stamp(a, cfg, "k1", 1)
    a("s_barrier")
    stamp(a, cfg, "k1", 2)
    for t in hl[HB1:]:
        a("\n".join(t))
    WF, HF, AC = 20, 84, [96, 112]
    lg = Lgkm(a)

    def rd(u):
        r, t = divmod(u, 16)
        if r == 0:
            lg.op(f"ds_read_b64_tr_b16 {v(WF+4*t,2)}, v{vWA} offset:{4096*t}", u)
            lg.op(f"ds_read_b64_tr_b16 {v(WF+4*t+2,2)}, v{vWA} offset:{4096*t+1024}", u)
        lg.op(f"ds_read_b128 {v(HF+4*(u%3),4)}, v{vHA+(t&7)} offset:{16384*r+256*(t>>3)}", u)

    def epi(r):
        A = AC[r & 1]
        out = []
        for q in range(4):
            for k in range(4):
                out.append(("v", f"v_mul_f32 v{A+4*q+k}, s46, v{A+4*q+k}"))
            out.append(("v", f"v_cvt_pk_bf16_f32 v{A+4*q}, v{A+4*q}, v{A+4*q+1}"))
            out.append(("v", f"v_cvt_pk_bf16_f32 v{A+4*q+1}, v{A+4*q+2}, v{A+4*q+3}"))
            out.append(("d", f"ds_write_b64 v{vSB}, {v(A+4*q,2)} offset:{32*272*r+16*q}"))
        return out
    rd(0)
    rd(1)
    pend = []
    for u in range(48):
        r, t = divmod(u, 16)
        lg.wait(u)
        A = AC[r & 1]
        a(f"v_mfma_f32_32x32x16_bf16 {v(A,16)}, {v(WF+4*t,4)}, {v(HF+4*(u%3),4)}, {'0' if t == 0 else v(A,16)}")
        if u == 13:
            a("s_waitcnt vmcnt(2)\ns_barrier")
        if u + 2 < 48:
            rd(u + 2)
        if r > 0 and t == 3:
            pend = epi(r - 1)
        for _ in range(4):
            if pend:
                k, txt = pend.pop(0)
                if k == "v":
                    a(txt)
                else:
                    lg.op(txt, ("w", r - 1))
        if r > 0 and t == 11:
            assert not pend
            lg.wait(("w", r - 1), extra="vmcnt(0)")
            stamp(a, cfg, "k1", 2 + r) if False else None
            a("s_barrier")
    a("s_nop 7\ns_nop 3\ns_mov_b32 exec_lo, 0xffff\ns_mov_b32 exec_hi, 0xffff")
    for k, txt in epi(2):
        a(txt)
    a("s_waitcnt lgkmcnt(0)")
    stamp(a, cfg, "k1", 5)
    a("s_barrier\ns_mov_b64 exec, -1\ns_branch K1_done")
    a("K1_idle:\ns_waitcnt lgkmcnt(0)\ns_barrier\ns_barrier\ns_barrier\ns_barrier\ns_barrier\ns_barrier\ns_branch K1_done")
    return dict(vgpr=128, sgpr=100 if cfg.get('stamps') else 64, lds=K1_LDS, threads=K1_THREADS, grid=256)
```
